```python
import torch

def _softmax(x, axis=-1):
    return torch.softmax(x, dim=axis)
def _gelu(x):
    return torch.nn.functional.gelu(x, approximate="tanh")
def _silu(x):
    return torch.nn.functional.silu(x)
def _sigmoid(x):
    return torch.sigmoid(x)
def _layernorm(x, axis=-1, eps=1e-5):
    m = x.mean(dim=axis, keepdim=True)
    v = x.var(dim=axis, keepdim=True, unbiased=False)
    return (x - m) / torch.sqrt(v + eps)
def _scatter_add(tgt, idx, src, axis=0):
    return tgt.clone().index_add_(axis, idx, src)
def _segment_sum(src, seg, n):
    out = torch.zeros((n,) + src.shape[1:], dtype=src.dtype)
    return out.index_add_(0, seg, src)
def _pad(x, pw):
    flat = tuple(v for pair in reversed(pw) for v in pair)
    return torch.nn.functional.pad(x, flat)

kernel_name = 'parallel_sum__linear_kernel_hedgehog__glu_gated_geglu__prompt'

def setup_inputs():

    _w = (lambda a: (lambda t: t.to(torch.bfloat16) if t.is_floating_point() else t)(torch.as_tensor(a)))
    def _A_setup():
        B, S, D, H = 1, 2048, 640, 32
        Dh = D // H
        return {
            "x": _w((lambda *s: torch.randn(*s, dtype=torch.bfloat16) * 0.05)(B, S, D)),
            "wqkv": _w((lambda *s: torch.randn(*s, dtype=torch.bfloat16) * 0.2)(D, 3 * D)),
            "w_phi": _w((lambda *s: torch.randn(*s, dtype=torch.bfloat16) * 0.2)(H, Dh, Dh) * (Dh ** -0.5)),
            "wo": _w((lambda *s: torch.randn(*s, dtype=torch.bfloat16) * 0.05)(D, D)),
        }
    _A_in = _A_setup()

    def _B_setup():
        B, S, Dm, Df = 1, 2048, 640, 1536
        return {
            "x": _w((lambda *s: torch.randn(*s, dtype=torch.bfloat16) * 0.05)(B, S, Dm)),
            "w_gate": _w((lambda *s: torch.randn(*s, dtype=torch.bfloat16) * 0.4)(Dm, Df) * (Dm ** -0.5)),
            "w_up": _w((lambda *s: torch.randn(*s, dtype=torch.bfloat16) * 0.4)(Dm, Df) * (Dm ** -0.5)),
            "w_down": _w((lambda *s: torch.randn(*s, dtype=torch.bfloat16) * 0.4)(Df, Dm) * (Df ** -0.5)),
        }
    _B_in = _B_setup()

    return {
        "A_x": _A_in["x"],
        "A_wqkv": _A_in["wqkv"],
        "A_w_phi": _A_in["w_phi"],
        "A_wo": _A_in["wo"],
        "B_x": _B_in["x"],
        "B_w_gate": _B_in["w_gate"],
        "B_w_up": _B_in["w_up"],
        "B_w_down": _B_in["w_down"],
    }

def reference(A_x, A_wqkv, A_w_phi, A_wo, B_x, B_w_gate, B_w_up, B_w_down):
    def _A_ref(x, wqkv, w_phi, wo):
        B, S, D = x.shape
        H = 32; Dh = D // H
        qkv = (lambda x, *d: x.permute(*d))((x @ wqkv).reshape(B, S, 3, H, Dh), 2, 0, 3, 1, 4)
        q, k, v = qkv[0], qkv[1], qkv[2]
        pq = torch.einsum("bhsd,hdf->bhsf", q, w_phi)
        pk = torch.einsum("bhsd,hdf->bhsf", k, w_phi)
        phi_q = torch.concatenate([_softmax(pq, axis=-1), _softmax(-pq, axis=-1)], axis=-1)
        phi_k = torch.concatenate([_softmax(pk, axis=-1), _softmax(-pk, axis=-1)], axis=-1)
        kv = torch.einsum("bhsf,bhsd->bhfd", phi_k, v)
        z  = torch.einsum("bhsf->bhf", phi_k)
        num = torch.einsum("bhqf,bhfd->bhqd", phi_q, kv)
        den = torch.einsum("bhqf,bhf->bhq", phi_q, z)[..., None] + 1e-6
        o = num / den
        return (lambda x, *d: x.permute(*d))(o, 0, 2, 1, 3).reshape(B, S, D) @ wo

    def _B_ref(x, w_gate, w_up, w_down):
        g = torch.einsum("bsd,df->bsf", x, w_gate)
        u = torch.einsum("bsd,df->bsf", x, w_up)
        h = _gelu(g) * u
        return torch.einsum("bsf,fd->bsd", h, w_down)

    x = A_x
    xn = _layernorm(x, axis=-1)
    return x + _A_ref(xn, A_wqkv, A_w_phi, A_wo) + _B_ref(xn, B_w_gate, B_w_up, B_w_down)
```

```python
class Asm:
    def __init__(self):
        self.lines = []
        self.uid = 0
    def __call__(self, s):
        for l in s.strip("\n").split("\n"):
            self.lines.append("    " + l.strip())
    def raw(self, s):
        self.lines.append(s)
    def label(self, name):
        self.lines.append(name + ":")
    def newlabel(self, base):
        self.uid += 1
        return "L_%s_%d" % (base, self.uid)
    def nop(self, n):
        while n > 0:
            k = min(n, 16)
            self("s_nop %d" % (k - 1))
            n -= k
    def text(self):
        return "\n".join(self.lines) + "\n"

def vr(b, n=1):
    return "v%d" % b if n == 1 else "v[%d:%d]" % (b, b + n - 1)
def sr(b, n=1):
    return "s%d" % b if n == 1 else "s[%d:%d]" % (b, b + n - 1)

def srd(a, d, base, nbytes):
    a("s_mov_b32 s%d, s%d" % (d, base))
    a("s_and_b32 s%d, s%d, 0xffff" % (d + 1, base + 1))
    a("s_mov_b32 s%d, 0x%x" % (d + 2, nbytes))
    a("s_mov_b32 s%d, 0x00020000" % (d + 3))

def kernel_begin(a, name):
    a.raw(".globl %s" % name)
    a.raw(".p2align 8")
    a.raw(".type %s,@function" % name)
    a.raw("%s:" % name)

def kernel_desc(name, vgpr, sgpr, accum=None):
    if accum is None:
        accum = (vgpr + 3) // 4 * 4
    return """.amdhsa_kernel %s
  .amdhsa_next_free_vgpr %d
  .amdhsa_next_free_sgpr %d
  .amdhsa_accum_offset %d
  .amdhsa_group_segment_fixed_size 0
  .amdhsa_kernarg_size 88
  .amdhsa_user_sgpr_count 2
  .amdhsa_user_sgpr_kernarg_segment_ptr 1
  .amdhsa_system_sgpr_workgroup_id_x 1
.end_amdhsa_kernel
""" % (name, vgpr, sgpr, accum)
```

```python
from asmlib import *
from layout import *
import os
EXP = os.environ.get('K1EXP', '')

class Vm:
    def __init__(self, a):
        self.a = a; self.q = []
    def issue(self, tag):
        self.q.append(tag)
    def wait(self, tags, extra=""):
        if isinstance(tags, str): tags = [tags]
        idxs = [i for i, t in enumerate(self.q) if t in tags]
        if not idxs:
            if extra: self.a("s_waitcnt" + extra)
            return
        idx = max(idxs)
        n = len(self.q) - 1 - idx
        self.a("s_waitcnt vmcnt(%d)%s" % (min(n, 63), extra))
        self.q = self.q[idx + 1:] if n <= 63 else self.q[len(self.q) - 63:]

LOG2E = 0x3fb8aa3b
STAMP = 'stamp' in EXP
def gen_k1(a):
    nst = [0]
    def stamp():
        if not STAMP: return
        a("s_memtime s[%d:%d]" % (78 + 2 * nst[0], 79 + 2 * nst[0]))
        nst[0] += 1
    name = "k1_kernel"
    kernel_begin(a, name)
    WSL = 20480; XS = 4 * WSL
    IMG = XS + 3 * 16384
    CS = IMG + 15360
    STT = CS + 1536
    CNT = STT + 1024
    LDS = CNT + 64
    TI = 0
    ACC = 64
    NEGM, RSTD = 12, 14
    TRB0, TRB1, VWA, VWF, VX0, VX1, XR0, ST2, CSV, TMP = 236, 237, 238, 239, 240, 241, 242, 246, 248, 252
    a("s_cmp_ge_u32 s2, 256")
    a("s_cbranch_scc1 L_k1_end")
    stamp()
    a("s_load_dwordx4 s[4:7], s[0:1], 0")
    a("s_load_dwordx2 s[10:11], s[0:1], 40")
    a("s_load_dwordx2 s[12:13], s[0:1], 48")
    a("s_load_dwordx2 s[8:9], s[0:1], 16")
    a("s_load_dwordx2 s[14:15], s[0:1], 80")
    a("s_load_dwordx2 s[58:59], s[0:1], 72")
    a("v_lshrrev_b32 v2, 6, v0")
    a("v_and_b32 v1, 63, v0")
    a("s_nop 0")
    a("v_readfirstlane_b32 s40, v2")
    a("s_and_b32 s42, s2, 7")
    a("s_lshr_b32 s43, s2, 7")
    a("s_lshl_b32 s43, s43, 3")
    a("s_or_b32 s42, s42, s43")
    a("s_bfe_u32 s41, s2, 0x40003")
    a("s_and_b32 s60, s40, 3")
    a("s_lshr_b32 s61, s40, 2")
    a("v_lshrrev_b32 v3, 5, v1")
    a("v_and_b32 v4, 31, v1")
    a("v_lshrrev_b32 v5, 2, v1")
    a("v_and_b32 v6, 3, v1")
    a("s_lshl_b32 s43, s60, 2")
    a("v_add_u32 v7, s43, v6")
    a("v_min_u32 v7, 14, v7")
    a("v_mul_u32_u24 v8, 13, v7")
    a("v_lshrrev_b32 v8, 6, v8")
    a("v_mul_u32_u24 v9, 5, v8")
    a("v_sub_u32 v9, v7, v9")
    a("v_lshrrev_b32 v10, 1, v8")
    a("v_sub_u32 v10, 1, v10")
    a("v_xor_b32 v8, v8, v10")
    a("v_mul_u32_u24 v8, 1280, v8")
    a("v_lshl_add_u32 v8, v9, 4, v8")
    a("v_mul_u32_u24 v9, 3840, v5")
    a("s_mul_i32 s43, s42, 80")
    a("v_add3_u32 v%d, v8, v9, s43" % VWA)
    a("v_mul_u32_u24 v9, 3072, v5")
    a("v_lshl_add_u32 v9, v6, 4, v9")
    a("s_mul_i32 s43, s42, 192")
    a("v_add_u32 v%d, s43, v9" % VWF)
    a("v_lshrrev_b32 v5, 3, v1")
    a("v_and_b32 v6, 7, v1")
    a("v_lshrrev_b32 v7, 1, v5")
    a("v_xor_b32 v8, v6, v7")
    a("v_mul_u32_u24 v9, 1280, v5")
    a("v_lshl_add_u32 v%d, v8, 4, v9" % VX0)
    a("v_xor_b32 v8, 4, v8")
    a("v_lshl_add_u32 v%d, v8, 4, v9" % VX1)
    a("v_add_u32 v%d, %d, v%d" % (VX1, 8 * 1280, VX1))
    a("s_lshl_b32 s45, s41, 7")
    a("s_lshl_b32 s43, s40, 4")
    a("s_add_u32 s45, s45, s43")
    a("s_mul_i32 s45, s45, 1280")
    a("s_lshl_b32 s57, s40, 11")
    a("s_add_u32 s57, s57, %d" % XS)
    a("s_lshl_b32 s46, s60, 11")
    a("s_cmp_eq_u32 s60, 3")
    a("s_cselect_b32 s48, 0x77777777, -1")
    a("s_mov_b32 s49, s48")
    a("s_lshl_b32 s43, s60, 1")
    a("s_add_u32 s43, s43, 4")
    a("s_cmp_eq_u32 s61, 0")
    a("s_cselect_b32 s62, s60, s43")
    a("s_waitcnt lgkmcnt(0)")
    stamp()
    srd(a, 16, 4, 2048 * 1280)
    srd(a, 20, 6, 640 * 3840)
    for n in range(2):
        S = 24 + 4 * n
        a("s_add_u32 s43, s62, %d" % n)
        a("s_lshr_b32 s44, s43, 1")
        a("s_and_b32 s47, s43, 1")
        a("s_bitcmp1_b32 s44, 0")
        a("s_cselect_b32 s%d, s12, s10" % S)
        a("s_cselect_b32 s%d, s13, s11" % (S + 1))
        a("s_and_b32 s%d, s%d, 0xffff" % (S + 1, S + 1))
        a("s_mov_b32 s%d, %d" % (S + 2, 640 * 3072))
        a("s_mov_b32 s%d, 0x00020000" % (S + 3))
        a("s_mul_i32 s%d, s47, %d" % (72 + n, 16 * 3072))
        a("s_lshr_b32 s43, s44, 1")
        a("s_lshl_b32 s43, s43, 6")
        a("s_add_u32 s%d, s%d, s43" % (72 + n, 72 + n))
        a("s_lshl_b32 s%d, s44, 11" % (75 + n))
        a("s_lshl_b32 s43, s47, 10")
        a("s_add_u32 s%d, s%d, s43" % (75 + n, 75 + n))
        a("s_add_u32 s%d, s%d, 8192" % (75 + n, 75 + n))

    def dma_w(role, st):
        out = []; tag = "W%d" % st; slot = st % 4
        if role == 0:
            out.append("s_mov_b32 s44, %d" % (32 * st * 3840))
            out.append("s_mov_b64 exec, s[48:49]")
            for j in range(2):
                out.append("s_add_u32 m0, s46, %d" % (slot * WSL + j * 1024))
                out.append("s_nop 0" if j == 0 else "s_add_u32 s44, s44, %d" % (16 * 3840))
                out.append(("buffer_load_dwordx4 v%d, s[20:23], s44 offen lds" % VWA, tag))
            out.append("s_mov_b64 exec, -1")
        for n in range(1 if role == 0 else 2):
            out.append("s_add_u32 m0, s%d, %d" % (75 + n, slot * WSL))
            out.append("s_add_u32 s44, s%d, %d" % (72 + n, 32 * st * 3072))
            out.append(("buffer_load_dwordx4 v%d, s[%d:%d], s44 offen lds" % (VWF, 24 + 4 * n, 27 + 4 * n), tag))
        return out
    def dma_x(xb):
        out = []; tag = "X%d" % xb; slot = xb % 3
        out.append("s_add_u32 s44, s45, %d" % (128 * xb))
        for g in range(2):
            out.append("s_add_u32 m0, s57, %d" % (slot * 16384 + g * 1024))
            out.append("s_nop 0")
            out.append(("buffer_load_dwordx4 v%d, s[16:19], s44 offen lds" % (VX0 + g), tag))
        return out

    a("s_cmp_eq_u32 s61, 1")
    a("s_cbranch_scc1 L_k1_roleB")
    for role in range(2):
        vm = Vm(a)
        def emit(l):
            if isinstance(l, tuple):
                a(l[0]); vm.issue(l[1])
            else:
                a(l)
        if role == 1:
            a.label("L_k1_roleB")
        nt = 4 if role == 0 else 6
        t0 = 0 if role == 0 else 4
        WF = [16, 40]
        XF = [32, 56] if role == 0 else [160, 164]
        for l in dma_w(role, 0): emit(l)
        for l in dma_x(0): emit(l)
        for l in dma_w(role, 1): emit(l)
        for l in dma_w(role, 2): emit(l)
        for l in dma_x(1): emit(l)
        for l in dma_w(role, 3): emit(l)
        for l in dma_x(2): emit(l)
        if role == 0: stamp()
        srd(a, 32, 14, 32 * 1024 * 1024)
        srd(a, 36, 8, 32 * 800)
        a("v_lshlrev_b32 v5, 3, v3")
        a("v_bfe_u32 v6, v1, 2, 2")
        a("v_add_u32 v5, v5, v6")
        a("v_lshlrev_b32 v5, 6, v5")
        a("v_bfe_u32 v6, v1, 4, 1")
        a("v_lshl_add_u32 v5, v6, 5, v5")
        a("v_and_b32 v6, 3, v1")
        a("v_lshl_add_u32 v%d, v6, 3, v5" % TRB0)
        a("v_add_u32 v%d, %d, v%d" % (TRB1, 2 * WSL, TRB0))
        a("s_lshl_b32 s43, s60, 5")
        a("v_add_u32 v5, s43, v4")
        a("v_lshlrev_b32 v5, 7, v5")
        a("v_add_u32 v5, %d, v5" % XS)
        a("v_bfe_u32 v6, v4, 1, 3")
        for ks in range(4):
            a("v_add_u32 v7, %d, v3" % (2 * ks))
            a("v_xor_b32 v7, v7, v6")
            a("v_lshl_add_u32 v%d, v7, 4, v5" % (XR0 + ks))
        a("s_lshl_b32 s63, s60, 2")
        a("s_add_u32 s64, s60, 4")
        a("s_min_u32 s64, s64, 5")
        a("s_lshl_b32 s64, s64, 2")
        if role == 0:
            a("s_mul_i32 s43, s42, 1600")
            PH = 64
            for it in range(7):
                a("v_add_u32 v5, %d, v0" % (256 * it))
                a("v_min_u32 v5, 1599, v5")
                a("v_mul_u32_u24 v6, 1311, v5")
                a("v_lshrrev_b32 v%d, 19, v6" % (72 + it))
                a("v_mul_u32_u24 v7, 400, v%d" % (72 + it))
                a("v_sub_u32 v%d, v5, v7" % (80 + it))
                a("v_and_b32 v8, 1, v%d" % (72 + it))
                a("v_mul_u32_u24 v8, 400, v8")
                a("v_add_u32 v8, v8, v%d" % (80 + it))
                a("v_lshlrev_b32 v8, 1, v8")
                a("buffer_load_ushort v%d, v8, s[36:39], s43 offen" % (PH + it))
                vm.issue("PH")
            for it in range(7):
                sl = 72 + it; rem = 80 + it
                a("v_mul_u32_u24 v8, 3277, v%d" % rem)
                a("v_lshrrev_b32 v8, 16, v8")
                a("v_mul_u32_u24 v9, 20, v8")
                a("v_sub_u32 v9, v%d, v9" % rem)
                a("v_and_b32 v10, 1, v%d" % sl)
                a("v_mul_u32_u24 v10, 5, v10")
                a("v_lshrrev_b32 v11, 2, v9")
                a("v_add_u32 v10, v10, v11")
                a("v_lshlrev_b32 v10, 3, v10")
                a("v_lshrrev_b32 v11, 1, v%d" % sl)
                a("v_lshl_add_u32 v10, v11, 2, v10")
                a("v_and_b32 v11, 3, v9")
                a("v_add_u32 v10, v10, v11")
                a("v_mul_u32_u24 v10, 160, v10")
                a("v_mul_u32_u24 v11, 20, v%d" % sl)
                a("v_add_u32 v11, v11, v8")
                a("v_and_b32 v13, 0x73, v11")
                a("v_bfe_u32 v14, v11, 2, 1")
                a("v_lshl_add_u32 v13, v14, 3, v13")
                a("v_bfe_u32 v14, v11, 3, 1")
                a("v_lshl_add_u32 v13, v14, 2, v13")
                a("v_lshl_add_u32 v10, v13, 1, v10")
                a("v_add_u32 v%d, %d, v10" % (88 + it, IMG))
        else:
            a("v_mov_b32 v8, 0"); a("v_mov_b32 v9, 0"); a("v_mov_b32 v10, 0"); a("v_mov_b32 v11, 0")
            a("v_subrev_u32 v7, 256, v0")
            a("v_lshlrev_b32 v5, 4, v7")
            a("v_add_u32 v5, %d, v5" % IMG)
            for i in range(3):
                a("ds_write_b128 v5, v[8:11] offset:%d" % (i * 4096))
            a("v_cmp_gt_u32 vcc, 192, v7")
            a("s_and_saveexec_b64 s[50:51], vcc")
            a("ds_write_b128 v5, v[8:11] offset:%d" % (3 * 4096))
            a("s_mov_b64 exec, s[50:51]")
            a("v_mov_b32 v5, %d" % CNT)
            a("ds_write_b32 v5, v8")
            a("v_lshrrev_b32 v5, 5, v7")
            a("v_mul_u32_u24 v5, %d, v5" % WSL)
            a("v_lshl_add_u32 v5, v4, 6, v5")
            a("v_add_u32 v5, %d, v5" % (3 * 2048 + 48))
            a("v_mov_b32 v8, 0x3f80")
            a("v_cmp_gt_u32 vcc, 128, v7")
            a("s_and_saveexec_b64 s[50:51], vcc")
            a("ds_write_b128 v5, v[8:11]")
            a("s_mov_b64 exec, s[50:51]")
        for i in range(6):
            a("v_mov_b32 v%d, 0" % (ST2 + i))

        def frag_reads(st, kk, par):
            fs = WF[par]; slot = st % 4
            base = TRB0 if slot < 2 else TRB1
            out = ["ds_read_b128 %s, v%d offset:%d" % (vr(XF[par], 4), XR0 + 2 * (st & 1) + kk, ((st >> 1) % 3) * 16384)]
            for t in range(nt):
                for rd in range(2):
                    out.append("ds_read_b64_tr_b16 %s, v%d offset:%d" % (vr(fs + 4 * t + 2 * rd, 2), base, (slot & 1) * WSL + (t0 + t) * 2048 + kk * 1024 + rd * 256))
            return out
        if role == 0: stamp()
        vm.wait(["W0", "X0"], " lgkmcnt(0)")
        a("s_barrier")
        if role == 0: stamp()
        for l in frag_reads(0, 0, 0): a(l)
        if role == 0:
            vm.wait("PH")
            for it in range(7):
                a("ds_write_b16 v%d, v%d" % (88 + it, 64 + it))
            a("s_nop 1")
        for i in range(16 * nt):
            a("v_mov_b32 v%d, 0" % (ACC + i))
        for st in range(20):
            for kk in range(2):
                g = st * 2 + kk
                par = g & 1
                cur = WF[par]
                a("s_waitcnt lgkmcnt(0)")
                bar = False; rd = []; dm = []
                if kk == 0:
                    rd = frag_reads(st, 1, par ^ 1)
                elif st < 19:
                    bar = True
                    rd = frag_reads(st + 1, 0, par ^ 1)
                    if st + 4 < 20: dm = dma_w(role, st + 4)
                    if (st & 1) and (st >> 1) + 3 < 10: dm = dm + dma_x((st >> 1) + 3)
                groups = []
                for k in range(1 if role == 0 else 2):
                    for dd in range(2):
                        gq = ["s_set_gpr_idx_on s%d, 0x2" % (63 + k)]
                        for d in (2 * dd, 2 * dd + 1):
                            gq.append("v_lshlrev_b32 v%d, 16, v%d" % (TMP + 2 * (d & 1), cur + d))
                            gq.append("v_and_b32 v%d, 0xffff0000, v%d" % (TMP + 2 * (d & 1) + 1, cur + d))
                        gq.append("s_set_gpr_idx_off")
                        for d in range(2):
                            gq.append("v_pk_add_f32 %s, %s, %s" % (vr(CSV + 2 * k, 2), vr(CSV + 2 * k, 2), vr(TMP + 2 * d, 2)))
                        groups.append(gq)
                if role == 0:
                    xt = XF[par]
                    for dd in range(2):
                        gq = []
                        for d in (2 * dd, 2 * dd + 1):
                            gq.append("v_lshlrev_b32 v%d, 16, v%d" % (TMP + 2 * (d & 1), xt + d))
                            gq.append("v_and_b32 v%d, 0xffff0000, v%d" % (TMP + 2 * (d & 1) + 1, xt + d))
                        for d in range(2):
                            gq.append("v_pk_fma_f32 %s, %s, %s, %s" % (vr(ST2, 2), vr(TMP + 2 * d, 2), vr(TMP + 2 * d, 2), vr(ST2, 2)))
                        groups.append(gq)
                if 'nodot' in EXP: groups = []
                if 'nodma' in EXP: dm = []
                if 'notr' in EXP: rd = rd[:1]
                slots = [[] for _ in range(nt)]
                first = 1 if bar else 0
                nrs = 3 if role else 2
                per = (len(rd) + nrs - 1) // nrs if rd else 0
                for i, l in enumerate(rd):
                    slots[first + i // per].append(l)
                for i, gq in enumerate(groups):
                    slots[(nt - 4 + i) if role else i].extend(gq)
                if dm:
                    slots[nt - 1].extend(dm)
                for t in range(nt):
                    d = ACC + 16 * t
                    a("v_mfma_f32_32x32x16_bf16 %s, %s, %s, %s" % (vr(d, 16), vr(cur + 4 * t, 4), vr(XF[par], 4), vr(d, 16)))
                    if t == 0 and bar:
                        need = ["W%d" % (st + 1)] + (["X%d" % ((st + 1) >> 1)] if (st & 1) else [])
                        vm.wait(need)
                        a("s_barrier")
                    for l in slots[t]:
                        emit(l)
        if role == 0: stamp()
        a("s_lshl_b32 s43, s60, 7")
        a("s_add_u32 s43, s43, %d" % (CS + t0 * 128))
        a("v_lshlrev_b32 v9, 2, v4")
        a("v_add_u32 v9, s43, v9")
        a("v_add_f32 v%d, v%d, v%d" % (ST2, ST2, ST2 + 1))
        for k in range(1 if role == 0 else 2):
            a("v_add_f32 v%d, v%d, v%d" % (CSV + 2 * k, CSV + 2 * k, CSV + 2 * k + 1))
            a("v_mov_b32 v8, v%d" % (CSV + 2 * k))
            a("s_nop 1")
            a("v_permlane32_swap_b32 v8, v%d" % (CSV + 2 * k))
            a("s_nop 1")
            a("v_add_f32 v8, v8, v%d" % (CSV + 2 * k))
            a("ds_write_b32 v9, v8 offset:%d" % (k * 512))
        a("s_lshl_b32 s43, s60, 8")
        a("s_add_u32 s43, s43, %d" % STT)
        a("v_lshlrev_b32 v11, 3, v4")
        a("v_add_u32 v11, s43, v11")
        a("v_lshlrev_b32 v10, 4, v3")
        a("v_add_u32 v10, %d, v10" % (CS + t0 * 128))
        def lnfix(accreg, csreg, n):
            for i in range(0, n, 2):
                a("v_pk_fma_f32 %s, %s, %s, %s" % (vr(accreg + i, 2), vr(NEGM, 2), vr(csreg + i, 2), vr(accreg + i, 2)))
            for i in range(0, n, 2):
                a("v_pk_mul_f32 %s, %s, %s" % (vr(accreg + i, 2), vr(RSTD, 2), vr(accreg + i, 2)))
        if role == 0:
            a.nop(6)
            a("v_mov_b32 v8, v%d" % ST2)
            a("v_mov_b32 v5, v%d" % (ACC + 60))
            a("v_mov_b32 v6, v%d" % (ACC + 60))
            a("s_nop 1")
            a("v_permlane32_swap_b32 v8, v%d" % ST2)
            a("v_permlane32_swap_b32 v5, v6")
            a("s_nop 1")
            a("v_add_f32 v%d, v8, v%d" % (ST2, ST2))
            a("v_mov_b32 v8, 0x3acccccd")
            a("v_mul_f32 v12, v5, v8")
            a("v_mul_f32 v13, v%d, v8" % ST2)
            a("v_fma_f32 v13, -v12, v12, v13")
            a("v_max_f32 v13, 0, v13")
            a("v_cvt_pk_bf16_f32 v14, v12, v13")
            a("v_lshlrev_b32 v12, 16, v14")
            a("v_and_b32 v13, 0xffff0000, v14")
            a("v_add_f32 v13, 0x3727c5ac, v13")
            a("v_cvt_pk_bf16_f32 v14, v13, v13")
            a("v_and_b32 v13, 0xffff0000, v14")
            a("v_sqrt_f32 v13, v13")
            a("s_nop 0")
            a("v_cvt_pk_bf16_f32 v14, v13, v13")
            a("v_and_b32 v13, 0xffff0000, v14")
            a("v_rcp_f32 v14, v13")
            a("v_sub_f32 v13, 0, v12")
            a("v_mov_b32 v12, v13")
            a("v_mov_b32 v15, v14")
            a("ds_write_b64 v11, v[13:14]" if False else "ds_write_b32 v11, v13")
            a("ds_write_b32 v11, v14 offset:4")
            a("s_waitcnt lgkmcnt(0)")
            a("s_barrier")
            CQ = 160
            for t in range(4):
                for q in range(4):
                    if t == 3 and q == 3: continue
                    a("ds_read_b128 %s, v10 offset:%d" % (vr(CQ + 16 * t + 4 * q, 4), t * 128 + q * 32))
            a("v_mul_u32_u24 v9, 160, v4")
            a("v_lshl_add_u32 v9, v3, 4, v9")
            a("v_add_u32 v9, %d, v9" % IMG)
            a("s_waitcnt lgkmcnt(0)")
            lnfix(ACC, CQ, 60)
            for i in range(30):
                a("v_cvt_pk_bf16_f32 v%d, v%d, v%d" % (16 + i, ACC + 2 * i, ACC + 2 * i + 1))
            for tp in range(3):
                for s in range(5):
                    a("ds_read_b128 %s, v9 offset:%d" % (vr(160 + 4 * (tp * 5 + s), 4), tp * 32 * 160 + s * 32))
            for i in range(48):
                a("v_mov_b32 v%d, 0" % (64 + i))
            a("s_lshl_b32 s43, s60, 5")
            a("v_add_u32 v11, s43, v4")
            a("v_mul_u32_u24 v11, 288, v11")
            a("v_add_u32 v11, %d, v11" % TI)
            a("v_lshl_add_u32 v10, v3, 3, v11")
            a("s_waitcnt lgkmcnt(0)")
            for s in range(5):
                for tp in range(3):
                    a("v_mfma_f32_32x32x16_bf16 %s, %s, %s, %s" % (vr(64 + 16 * tp, 16), vr(160 + 4 * (tp * 5 + s), 4), vr(16 + 4 * s, 4), vr(64 + 16 * tp, 16)))
            for i in range(5):
                a("ds_write_b64 v10, %s offset:%d" % (vr(36 + 2 * i, 2), 160 + 16 * i))
            a("s_mov_b32 s50, 0"); a("s_mov_b32 s51, -1")
            a("s_mov_b32 s52, -1"); a("s_mov_b32 s53, 0")
            a("s_lshl_b32 s43, s41, 4")
            a("s_add_u32 s43, s43, s42")
            a("s_lshl_b32 s43, s43, 2")
            a("s_add_u32 s43, s43, s60")
            a("s_mul_i32 s47, s43, 5120")
            a("s_add_u32 s47, s47, %d" % PHIQ_OFF)
            a("v_mul_u32_u24 v9, 160, v4")
            a("v_mov_b32 v16, 0x%x" % LOG2E)
            a("v_mov_b32 v17, 0x%x" % LOG2E)
            a("v_mov_b32 v20, 0x3f80"); a("v_mov_b32 v21, 0"); a("v_mov_b32 v22, 0"); a("v_mov_b32 v23, 0")
            a("s_mov_b64 exec, s[52:53]")
            a("ds_write_b128 v11, v[20:23] offset:240")
            a("s_mov_b64 exec, -1")
            a.nop(8)
            for i in range(0, 40, 2):
                a("v_cvt_pk_bf16_f32 v%d, v%d, v%d" % (112 + i // 2, 64 + i, 65 + i))
            for i in range(0, 40, 2):
                a("v_lshlrev_b32 v%d, 16, v%d" % (64 + i, 112 + i // 2))
                a("v_and_b32 v%d, 0xffff0000, v%d" % (65 + i, 112 + i // 2))
            for hs in range(2):
                X = 64 + 20 * hs
                mx, mn = 24 + 4 * hs, 26 + 4 * hs
                a("v_max3_f32 v%d, v%d, v%d, v%d" % (mx, X, X + 1, X + 2))
                a("v_min3_f32 v%d, v%d, v%d, v%d" % (mn, X, X + 1, X + 2))
                for i in range(3, 19, 2):
                    a("v_max3_f32 v%d, v%d, v%d, v%d" % (mx, mx, X + i, X + i + 1))
                    a("v_min3_f32 v%d, v%d, v%d, v%d" % (mn, mn, X + i, X + i + 1))
                a("v_max_f32 v%d, v%d, v%d" % (mx, mx, X + 19))
                a("v_min_f32 v%d, v%d, v%d" % (mn, mn, X + 19))
                a("v_mul_f32 v%d, v%d, v16" % (mx, mx))
                a("v_mul_f32 v%d, v%d, v16" % (mn, mn))
                a("v_sub_f32 v%d, 0, v%d" % (mx, mx))
                a("v_mov_b32 v%d, v%d" % (mx + 1, mx))
                a("v_mov_b32 v%d, v%d" % (mn + 1, mn))
            for hs in range(2):
                X = 64 + 20 * hs
                mx, mn = 24 + 4 * hs, 26 + 4 * hs
                for sign in range(2):
                    E = 160 + 40 * hs + 20 * sign
                    for i in range(0, 20, 2):
                        if sign == 0:
                            a("v_pk_fma_f32 %s, %s, v[16:17], %s" % (vr(E + i, 2), vr(X + i, 2), vr(mx, 2)))
                        else:
                            a("v_pk_fma_f32 %s, %s, v[16:17], %s neg_lo:[1,0,0] neg_hi:[1,0,0]" % (vr(E + i, 2), vr(X + i, 2), vr(mn, 2)))
            for i in range(80):
                a("v_exp_f32 v%d, v%d" % (160 + i, 160 + i))
            a("s_nop 0")
            for gi in range(4):
                E = 160 + 20 * gi; S = 32 + 2 * gi
                a("v_pk_add_f32 %s, %s, %s" % (vr(S, 2), vr(E, 2), vr(E + 2, 2)))
                for i in range(4, 20, 2):
                    a("v_pk_add_f32 %s, %s, %s" % (vr(S, 2), vr(S, 2), vr(E + i, 2)))
            for gi in range(4):
                S = 32 + 2 * gi
                a("v_add_f32 v%d, v%d, v%d" % (S, S, S + 1))
            for gi in range(4):
                S = 32 + 2 * gi
                a("v_rcp_f32 v%d, v%d" % (S, S))
            a("s_nop 0")
            for gi in range(4):
                S = 32 + 2 * gi
                a("v_mov_b32 v%d, v%d" % (S + 1, S))
            for gi in range(4):
                E = 160 + 20 * gi; S = 32 + 2 * gi
                for i in range(0, 20, 2):
                    a("v_pk_mul_f32 %s, %s, %s" % (vr(E + i, 2), vr(E + i, 2), vr(S, 2)))
            for i in range(40):
                a("v_cvt_pk_bf16_f32 v%d, v%d, v%d" % (64 + i, 160 + 2 * i, 161 + 2 * i))
            a("s_mov_b64 exec, s[52:53]")
            for i in range(10):
                a("ds_write_b128 v11, %s offset:%d" % (vr(64 + 4 * i, 4), 16 * i))
            a("s_mov_b64 exec, s[50:51]")
            for i in range(10):
                a("buffer_store_dwordx4 %s, v9, s[32:35], s47 offen offset:%d" % (vr(64 + 4 * i, 4), 16 * i))
            a("s_mov_b64 exec, -1")
            stamp()
            a("v_lshrrev_b32 v5, 4, v1")
            a("v_bfe_u32 v6, v1, 2, 2")
            a("v_lshl_add_u32 v5, v5, 2, v6")
            a("v_mul_u32_u24 v5, 288, v5")
            a("v_and_b32 v6, 3, v1")
            a("v_lshl_add_u32 v5, v6, 3, v5")
            a("v_add_u32 v5, %d, v5" % TI)
            a("s_lshl_b32 s43, s42, 4")
            a("s_add_u32 s43, s43, s41")
            a("s_mul_i32 s47, s43, 15360")
            a("s_add_u32 s47, s47, %d" % PART_OFF)
            a("v_lshlrev_b32 v8, 4, v1")
            a("v_mov_b32 v6, %d" % CNT)
            a("v_mov_b32 v7, 1")
            a("s_waitcnt lgkmcnt(0)")
            a("s_mov_b64 exec, 1")
            a("ds_add_u32 v6, v7")
            a("s_mov_b64 exec, -1")
            a.label("L_k1_poll")
            a("ds_read_b32 v7, v6")
            a("s_waitcnt lgkmcnt(0)")
            a("v_readfirstlane_b32 s43, v7")
            a("s_nop 3")
            a("s_cmp_lt_u32 s43, 4")
            a("s_cbranch_scc1 L_k1_poll")
            for jj in range(4):
                a("s_add_u32 s54, s60, %d" % (4 * jj))
                a("s_min_u32 s54, s54, 14")
                a("s_mul_i32 s55, s54, 11")
                a("s_lshr_b32 s55, s55, 5")
                a("s_mul_i32 s56, s55, 3")
                a("s_sub_u32 s56, s54, s56")
                a("s_lshl_b32 s55, s55, 5")
                a("s_lshl_b32 s56, s56, 5")
                a("s_add_u32 s56, s56, 160")
                a("v_add_u32 v6, s55, v5")
                a("v_add_u32 v7, s56, v5")
                B = 104 + 32 * jj
                for kt in range(4):
                    for rd in range(2):
                        a("ds_read_b64_tr_b16 %s, v6 offset:%d" % (vr(B + 8 * kt + 2 * rd, 2), (32 * kt + 16 * rd) * 288))
                        a("ds_read_b64_tr_b16 %s, v7 offset:%d" % (vr(B + 4 + 8 * kt + 2 * rd, 2), (32 * kt + 16 * rd) * 288))
                a("s_lshl_b32 s54, s54, 10")
                a("s_add_u32 s%d, s54, s47" % (65 + jj))
            for e in range(16):
                a("v_mov_b32 v%d, 0" % (16 + e))
            a("s_waitcnt lgkmcnt(0)")
            for kt in range(4):
                for jj in range(4):
                    B = 104 + 32 * jj
                    a("v_mfma_f32_16x16x32_bf16 %s, %s, %s, %s" % (vr(16 + 4 * jj, 4), vr(B + 8 * kt, 4), vr(B + 4 + 8 * kt, 4), vr(16 + 4 * jj, 4)))
            a.nop(8)
            for jj in range(4):
                a("buffer_store_dwordx4 %s, v8, s[32:35], s%d offen" % (vr(16 + 4 * jj, 4), 65 + jj))
            if STAMP:
                a("s_waitcnt vmcnt(0)")
                stamp()
                a("s_waitcnt lgkmcnt(0)")
                a("s_cmp_lg_u32 s2, 0")
                a("s_cbranch_scc1 L_k1_end")
                a("s_cmp_lg_u32 s40, 0")
                a("s_cbranch_scc1 L_k1_end")
                srd(a, 16, 58, 256)
                a("v_mov_b32 v2, 0")
                for i in range(nst[0]):
                    a("s_sub_u32 s43, s%d, s78" % (78 + 2 * i))
                    a("v_mov_b32 v3, s43")
                    a("buffer_store_dword v3, v2, s[16:19], 0 offen offset:%d" % (4 * i))
            a("s_endpgm")
        else:
            a("s_waitcnt lgkmcnt(0)")
            a("s_barrier")
            a("ds_read_b32 v12, v11")
            a("ds_read_b32 v14, v11 offset:4")
            def cq(t, q):
                i = 16 * t + 4 * q
                return 160 + i if i < 64 else 16 + (i - 64)
            for t in range(6):
                for q in range(4):
                    a("ds_read_b128 %s, v10 offset:%d" % (vr(cq(t, q), 4), t * 128 + q * 32))
            a("s_lshl_b32 s43, s41, 1")
            a("s_lshr_b32 s47, s60, 1")
            a("s_add_u32 s43, s43, s47")
            a("s_mul_i32 s43, s43, 68")
            a("s_mul_i32 s47, s42, 3")
            a("s_add_u32 s43, s43, s47")
            a("s_add_u32 s43, s43, 20")
            a("s_lshl_b32 s43, s43, 12")
            a("s_and_b32 s47, s60, 1")
            a("s_lshl_b32 s47, s47, 11")
            a("s_add_u32 s47, s47, s43")
            a("v_lshlrev_b32 v5, 6, v4")
            a("v_lshl_add_u32 v5, v3, 3, v5")
            a("v_mov_b32 v48, 0xc0135761"); a("v_mov_b32 v49, 0xc0135761")
            a("v_mov_b32 v50, 0x3d372713"); a("v_mov_b32 v51, 0x3d372713")
            a("v_mov_b32 v52, 1.0"); a("v_mov_b32 v53, 1.0")
            a("s_waitcnt lgkmcnt(0)")
            a("v_mov_b32 v13, v12")
            a("v_mov_b32 v15, v14")
            for t in range(6):
                lnfix(ACC + 16 * t, cq(t, 0), 16)
            for i in range(0, 96, 2):
                a("v_cvt_pk_bf16_f32 v%d, v%d, v%d" % (160 + i // 2, ACC + i, ACC + i + 1))
            for i in range(0, 96, 2):
                a("v_lshlrev_b32 v%d, 16, v%d" % (ACC + i, 160 + i // 2))
                a("v_and_b32 v%d, 0xffff0000, v%d" % (ACC + i + 1, 160 + i // 2))
            for i in range(3):
                G = ACC + 32 * i; T = 160 + 16 * i
                for e in range(0, 16, 2):
                    a("v_pk_mul_f32 %s, %s, %s" % (vr(T + e, 2), vr(G + e, 2), vr(G + e, 2)))
                for e in range(0, 16, 2):
                    a("v_pk_fma_f32 %s, %s, v[50:51], v[52:53]" % (vr(T + e, 2), vr(T + e, 2)))
                for e in range(0, 16, 2):
                    a("v_pk_mul_f32 %s, %s, %s" % (vr(T + e, 2), vr(T + e, 2), vr(G + e, 2)))
                for e in range(0, 16, 2):
                    a("v_pk_mul_f32 %s, %s, v[48:49]" % (vr(T + e, 2), vr(T + e, 2)))
            for i in range(48):
                a("v_exp_f32 v%d, v%d" % (160 + i, 160 + i))
            a("s_nop 0")
            for e in range(0, 48, 2):
                a("v_pk_add_f32 %s, %s, v[52:53]" % (vr(160 + e, 2), vr(160 + e, 2)))
            for i in range(48):
                a("v_rcp_f32 v%d, v%d" % (160 + i, 160 + i))
            a("s_nop 0")
            for i in range(3):
                G = ACC + 32 * i; T = 160 + 16 * i
                for e in range(0, 16, 2):
                    a("v_pk_mul_f32 %s, %s, %s" % (vr(T + e, 2), vr(T + e, 2), vr(G + e, 2)))
            for e in range(0, 48, 2):
                a("v_cvt_pk_bf16_f32 v%d, v%d, v%d" % (16 + e // 2, 160 + e, 161 + e))
            for e in range(0, 48, 2):
                a("v_lshlrev_b32 v%d, 16, v%d" % (160 + e, 16 + e // 2))
                a("v_and_b32 v%d, 0xffff0000, v%d" % (161 + e, 16 + e // 2))
            for i in range(3):
                U = ACC + 32 * i + 16; T = 160 + 16 * i
                for e in range(0, 16, 2):
                    a("v_pk_mul_f32 %s, %s, %s" % (vr(T + e, 2), vr(T + e, 2), vr(U + e, 2)))
            for e in range(0, 48, 2):
                a("v_cvt_pk_bf16_f32 v%d, v%d, v%d" % (16 + e // 2, 160 + e, 161 + e))
            for i in range(3):
                for q in range(4):
                    a("buffer_store_dwordx2 %s, v5, s[32:35], s47 offen offset:%d" % (vr(16 + 8 * i + 2 * q, 2), q * 16))
                a("s_add_u32 s47, s47, 4096")
    a.label("L_k1_end")
    a("s_endpgm")
    return dict(name=name, vgpr=256, sgpr=102, grid=256, block=512, lds=LDS, accum=256)
```

```python
from asmlib import *
from layout import *
def gen_k15(a):
    name = "k15_kernel"
    kernel_begin(a, name)
    a("s_cmp_ge_u32 s2, 256")
    a("s_cbranch_scc1 L_k15_end")
    a("s_load_dwordx2 s[14:15], s[0:1], 80")
    a("v_lshrrev_b32 v2, 6, v0")
    a("v_and_b32 v1, 63, v0")
    a("s_nop 0")
    a("v_readfirstlane_b32 s40, v2")
    a("s_and_b32 s42, s2, 7")
    a("s_lshr_b32 s43, s2, 7")
    a("s_lshl_b32 s43, s43, 3")
    a("s_or_b32 s42, s42, s43")
    a("s_bfe_u32 s41, s2, 0x40003")
    a("v_lshrrev_b32 v3, 5, v1")
    a("v_and_b32 v4, 31, v1")
    a("v_mov_b32 v8, 0"); a("v_mov_b32 v9, 0"); a("v_mov_b32 v10, 0"); a("v_mov_b32 v11, 0")
    a("v_lshlrev_b32 v5, 4, v0")
    a("ds_write_b128 v5, v[8:11]")
    a("ds_write_b128 v5, v[8:11] offset:4096")
    a("v_cmp_gt_u32 vcc, 128, v0")
    a("s_and_saveexec_b64 s[48:49], vcc")
    a("ds_write_b128 v5, v[8:11] offset:8192")
    a("s_mov_b64 exec, s[48:49]")
    a("s_waitcnt lgkmcnt(0)")
    srd(a, 32, 14, 32 * 1024 * 1024)
    a("s_lshl_b32 s43, s41, 4")
    a("s_add_u32 s43, s43, s42")
    a("s_lshl_b32 s43, s43, 2")
    a("s_add_u32 s43, s43, s40")
    a("s_mul_i32 s47, s43, 5120")
    a("s_add_u32 s47, s47, %d" % PHIQ_OFF)
    a("v_mul_u32_u24 v6, 160, v4")
    a("v_mul_u32_u24 v7, 80, v3")
    a("v_add_u32 v6, v6, v7")
    for i in range(5):
        a("buffer_load_dwordx4 %s, v6, s[32:35], s47 offen offset:%d" % (vr(16 + 4 * i, 4), 16 * i))
    a("s_mul_i32 s46, s42, %d" % (16 * 15360))
    a("s_add_u32 s46, s46, %d" % PART_OFF)
    a("v_lshlrev_b32 v8, 4, v1")
    a("s_barrier")
    def loads(jj):
        a("s_add_u32 s54, s40, %d" % (4 * jj))
        a("s_min_u32 s54, s54, 14")
        a("s_lshl_b32 s55, s54, 10")
        a("s_add_u32 s55, s55, s46")
        for rr in range(16):
            a("buffer_load_dwordx4 %s, v8, s[32:35], s55 offen" % vr(64 + 64 * (jj % 3) + 4 * rr, 4))
            if rr < 15: a("s_add_u32 s55, s55, 15360")
    loads(0); loads(1); loads(2)
    for jj in range(4):
        B = 64 + 64 * (jj % 3)
        a("s_waitcnt vmcnt(%d)" % [32, 32, 16, 0][jj])
        for step in (8, 4, 2, 1):
            for rr in range(step):
                for i in (0, 2):
                    a("v_pk_add_f32 %s, %s, %s" % (vr(B + 4 * rr + i, 2), vr(B + 4 * rr + i, 2), vr(B + 4 * (rr + step) + i, 2)))
        a("s_add_u32 s54, s40, %d" % (4 * jj))
        a("s_min_u32 s54, s54, 14")
        a("s_mul_i32 s55, s54, 11")
        a("s_lshr_b32 s55, s55, 5")
        a("s_mul_i32 s56, s55, 3")
        a("s_sub_u32 s56, s54, s56")
        a("s_lshl_b32 s55, s55, 4")
        a("s_lshl_b32 s56, s56, 4")
        a("v_and_b32 v9, 15, v1")
        a("v_add_u32 v9, s56, v9")
        a("v_lshrrev_b32 v10, 4, v1")
        a("v_lshlrev_b32 v10, 2, v10")
        a("v_add_u32 v10, s55, v10")
        a("v_cmp_le_u32 vcc, 40, v10")
        a("s_nop 1")
        a("v_cndmask_b32 v11, 0, 1, vcc")
        a("v_mul_u32_u24 v12, 40, v11")
        a("v_sub_u32 v10, v10, v12")
        a("v_mul_u32_u24 v12, 20, v11")
        a("v_sub_u32 v12, v9, v12")
        a("v_cmp_gt_u32 s[50:51], 20, v12")
        a("v_cmp_eq_u32 s[52:53], 40, v9")
        a("s_nop 1")
        a("v_cndmask_b32 v12, v12, 20, s[52:53]")
        a("s_or_b64 s[50:51], s[50:51], s[52:53]")
        a("v_lshrrev_b32 v13, 2, v12")
        a("v_lshlrev_b32 v13, 3, v13")
        a("v_lshl_add_u32 v13, v11, 2, v13")
        a("v_and_b32 v14, 3, v12")
        a("v_add_u32 v13, v13, v14")
        a("v_mul_u32_u24 v13, 160, v13")
        a("v_lshrrev_b32 v14, 3, v10")
        a("v_lshlrev_b32 v14, 4, v14")
        a("v_lshl_add_u32 v14, v11, 3, v14")
        a("v_and_b32 v15, 7, v10")
        a("v_add_u32 v14, v14, v15")
        a("v_lshl_add_u32 v13, v14, 1, v13")
        a("v_cvt_pk_bf16_f32 v14, v%d, v%d" % (B, B + 1))
        a("v_cvt_pk_bf16_f32 v15, v%d, v%d" % (B + 2, B + 3))
        a("s_and_saveexec_b64 s[48:49], s[50:51]")
        a("ds_write_b64 v13, v[14:15]")
        a("s_mov_b64 exec, s[48:49]")
        if jj == 0: loads(3)
    a("s_waitcnt lgkmcnt(0)")
    a("s_barrier")
    a("v_mul_u32_u24 v9, 160, v4")
    a("v_lshl_add_u32 v9, v3, 4, v9")
    for u in range(2):
        for s in range(5):
            a("ds_read_b128 %s, v9 offset:%d" % (vr(64 + 4 * (u * 5 + s), 4), u * 32 * 160 + s * 32))
    for i in range(32):
        a("v_mov_b32 v%d, 0" % (128 + i))
    a("s_waitcnt vmcnt(0) lgkmcnt(0)")
    for s in range(5):
        for u in range(2):
            a("v_mfma_f32_32x32x16_bf16 %s, %s, %s, %s" % (vr(128 + 16 * u, 16), vr(64 + 4 * (u * 5 + s), 4), vr(16 + 4 * s, 4), vr(128 + 16 * u, 16)))
    a("s_lshl_b32 s43, s41, 1")
    a("s_lshr_b32 s47, s40, 1")
    a("s_add_u32 s43, s43, s47")
    a("s_mul_i32 s43, s43, %d" % (68 * 4096))
    a("s_and_b32 s47, s40, 1")
    a("s_lshl_b32 s47, s47, 11")
    a("s_add_u32 s47, s47, s43")
    a("s_mul_i32 s43, s42, 40")
    a("v_mul_u32_u24 v9, 20, v3")
    a("v_add_u32 v9, s43, v9")
    a("v_lshlrev_b32 v10, 6, v4")
    for m in range(5):
        a("v_add_u32 v11, %d, v9" % (4 * m))
        a("v_lshrrev_b32 v12, 5, v11")
        a("v_lshlrev_b32 v12, 12, v12")
        a("v_and_b32 v11, 31, v11")
        a("v_lshl_add_u32 v12, v11, 1, v12")
        a("v_add_u32 v%d, v12, v10" % (40 + m))
    a.nop(4)
    for i in range(0, 20, 2):
        a("v_cvt_pk_bf16_f32 v%d, v%d, v%d" % (48 + i // 2, 128 + i, 129 + i))
    a("v_cvt_pk_bf16_f32 v58, v148, v148")
    a("v_and_b32 v58, 0xffff0000, v58")
    a("v_add_f32 v58, 0x358637bd, v58")
    a("v_cvt_pk_bf16_f32 v58, v58, v58")
    a("v_and_b32 v58, 0xffff0000, v58")
    a("v_rcp_f32 v58, v58")
    for i in range(0, 20, 2):
        a("v_lshlrev_b32 v%d, 16, v%d" % (128 + i, 48 + i // 2))
        a("v_and_b32 v%d, 0xffff0000, v%d" % (129 + i, 48 + i // 2))
    a("v_mov_b32 v59, v58")
    for i in range(0, 20, 2):
        a("v_pk_mul_f32 %s, %s, v[58:59]" % (vr(128 + i, 2), vr(128 + i, 2)))
    for i in range(0, 20, 2):
        a("v_cvt_pk_bf16_f32 v%d, v%d, v%d" % (48 + i // 2, 128 + i, 129 + i))
    for m in range(5):
        a("buffer_store_dwordx2 %s, v%d, s[32:35], s47 offen" % (vr(48 + 2 * m, 2), 40 + m))
    a.label("L_k15_end")
    a("s_endpgm")
    return dict(name=name, vgpr=256, sgpr=64, grid=256, block=256, lds=10240, accum=256)
```

```python
from asmlib import *
from layout import *

import os
EXP = os.environ.get('K2EXP', '')
def gen_k2(a):
    name = "k2_kernel"
    kernel_begin(a, name)
    NS = int(os.environ.get('K2NS', '4'))
    STG = 9216
    WREG = max(NS * STG, 21504)
    NK = 17
    a("s_cmp_ge_u32 s2, %s" % os.environ.get('K2WG', '256'))
    a("s_cbranch_scc1 L_k2_end")
    if 'empty' in EXP: a("s_branch L_k2_end")
    a("s_load_dwordx2 s[4:5], s[0:1], 0")
    a("s_load_dwordx2 s[6:7], s[0:1], 24")
    a("s_load_dwordx2 s[8:9], s[0:1], 56")
    a("s_load_dwordx2 s[10:11], s[0:1], 64")
    a("s_load_dwordx2 s[12:13], s[0:1], 80")
    a("v_lshrrev_b32 v1, 6, v0")
    a("v_and_b32 v2, 63, v0")
    a("s_nop 0")
    a("v_readfirstlane_b32 s32, v1")
    a("s_and_b32 s33, s2, 7")
    a("s_lshr_b32 s39, s2, 6")
    a("s_lshl_b32 s39, s39, 3")
    a("s_add_u32 s33, s33, s39")
    a("s_lshr_b32 s34, s2, 3")
    a("s_and_b32 s34, s34, 7")
    if 'map2' in EXP:
        a("s_and_b32 s33, s2, 3")
        a("s_lshl_b32 s33, s33, 3")
        a("s_bfe_u32 s39, s2, 0x30003")
        a("s_add_u32 s33, s33, s39")
        a("s_bfe_u32 s34, s2, 0x10002")
        a("s_lshl_b32 s34, s34, 2")
        a("s_lshr_b32 s39, s2, 6")
        a("s_add_u32 s34, s34, s39")
    if 'map3' in EXP:
        a("s_and_b32 s34, s2, 7")
        a("s_lshr_b32 s33, s2, 3")
    a("s_mul_i32 s38, s32, %d" % WREG)
    a("v_lshrrev_b32 v3, 4, v2")
    a("v_and_b32 v8, 1, v3")
    a("v_lshlrev_b32 v8, 1, v8")
    a("v_lshrrev_b32 v9, 1, v3")
    a("v_mul_u32_u24 v9, 3, v9")
    a("v_xor_b32 v8, v8, v9")
    a("v_and_b32 v9, 3, v2")
    a("v_xor_b32 v9, v9, v8")
    a("v_lshlrev_b32 v9, 4, v9")
    a("v_lshrrev_b32 v10, 2, v2")
    a("v_lshlrev_b32 v10, 6, v10")
    a("v_add_u32 v4, v10, v9")
    for i in range(1, 4):
        a("v_add_u32 v%d, %d, v4" % (4 + i, 1024 * i))
    for i in range(5):
        a("v_add_u32 v9, %d, v2" % (64 * i))
        a("v_mul_u32_u24 v10, 6554, v9")
        a("v_lshrrev_b32 v10, 16, v10")
        a("v_mul_u32_u24 v11, 10, v10")
        a("v_sub_u32 v11, v9, v11")
        a("v_bfe_u32 v17, v10, 2, 2")
        a("v_lshlrev_b32 v17, 3, v17")
        a("v_lshrrev_b32 v18, 4, v10")
        a("v_lshlrev_b32 v18, 2, v18")
        a("v_and_b32 v19, 3, v10")
        a("v_add3_u32 v17, v17, v18, v19")
        a("v_mul_u32_u24 v17, 1280, v17")
        a("v_lshl_add_u32 v%d, v11, 4, v17" % (12 + i))
    a("s_waitcnt lgkmcnt(0)")
    a("s_mul_i32 s39, s34, 160")
    for i in range(5):
        a("v_add_u32 v%d, s39, v%d" % (12 + i, 12 + i))
    if 'wt' in EXP:
        for i in range(5):
            a("v_lshlrev_b32 v%d, 4, v2" % (12 + i))
            a("v_add_u32 v%d, %d, v%d" % (12 + i, i * 1024, 12 + i))
    srd(a, 16, 12, AH_BYTES)
    srd(a, 24, 4, 2048 * 1280)
    srd(a, 28, 10, 2048 * 1280)
    a("s_mov_b32 s23, 0x00020000")
    a("s_mov_b32 s41, %d" % (640 * 1280))
    a("s_mov_b32 s42, %d" % (1536 * 1280))
    a("v_bfe_u32 v9, v2, 2, 2")
    a("v_and_b32 v10, 1, v9")
    a("v_lshlrev_b32 v10, 1, v10")
    a("v_lshrrev_b32 v11, 1, v9")
    a("v_mul_u32_u24 v11, 3, v11")
    a("v_xor_b32 v10, v10, v11")
    a("v_xor_b32 v10, v10, v3")
    a("v_and_b32 v11, 15, v2")
    a("v_lshlrev_b32 v11, 6, v11")
    a("v_lshl_add_u32 v20, v10, 4, v11")
    a("v_add_u32 v20, s38, v20")
    a("v_lshlrev_b32 v10, 2, v3")
    a("v_add_u32 v10, v10, v9")
    a("v_mul_u32_u24 v10, 160, v10")
    a("v_and_b32 v11, 3, v2")
    a("v_lshl_add_u32 v21, v11, 3, v10")
    a("v_add_u32 v21, s38, v21")
    a("v_add_u32 v21, 4096, v21")
    a("s_mul_i32 s37, s32, %d" % (NK * 32))
    a("s_mul_i32 s35, s33, %d" % (68 * 4096))
    a("s_lshl_b32 s39, s37, 7")
    a("s_add_u32 s35, s35, s39")
    ACC = 32
    FR = [112, 148]
    for i in range(80):
        a("v_mov_b32 v%d, 0" % (ACC + i))

    def dma_stage(st):
        slot = st % NS
        out = []
        out.append("s_cmp_lt_u32 s37, 640")
        out.append("s_cselect_b32 s20, s6, s8")
        out.append("s_cselect_b32 s21, s7, s9")
        out.append("s_cselect_b32 s22, s41, s42")
        out.append("s_cselect_b32 s36, 0, 640")
        out.append("s_and_b32 s21, s21, 0xffff")
        out.append("s_sub_u32 s36, s37, s36")
        out.append("s_mul_i32 s36, s36, 1280")
        for i in range(4):
            out.append("s_add_u32 m0, s38, %d" % (slot * STG + i * 1024))
            out.append("s_nop 0")
            out.append("buffer_load_dwordx4 v%d, s[16:19], s35 offen lds" % (4 + i))
        if 'wt' in EXP:
            out.append("s_mov_b32 s20, s16")
            out.append("s_mov_b32 s21, s17")
            out.append("s_mov_b32 s22, 0x2000000")
            out.append("s_mul_i32 s36, s34, %d" % (68 * 5120))
            out.append("s_mul_i32 s43, s37, 160")
            out.append("s_add_u32 s36, s36, s43")
            out.append("s_add_u32 s36, s36, %d" % WT_OFF)
        for i in range(5):
            out.append("s_add_u32 m0, s38, %d" % (slot * STG + 4096 + i * 1024))
            out.append("s_nop 0")
            out.append("buffer_load_dwordx4 v%d, s[20:23], s36 offen lds" % (12 + i))
        if 'nodma' in EXP: out = [l for l in out if 'buffer_load' not in l]
        out.append("s_add_u32 s35, s35, 4096")
        out.append("s_add_u32 s37, s37, 32")
        return out

    def frag_reads(st):
        slot = st % NS
        fs = FR[st & 1]
        out = []
        for t in range(5):
            for rd in range(2):
                out.append("ds_read_b64_tr_b16 %s, v21 offset:%d" % (vr(fs + 4 * t + 2 * rd, 2), slot * STG + t * 32 + rd * 2560))
        for i in range(4):
            out.append("ds_read_b128 %s, v20 offset:%d" % (vr(fs + 20 + 4 * i, 4), slot * STG + i * 1024))
        return out

    def mfmas(st):
        fs = FR[st & 1]
        out = []
        for tt in range(4):
            for ct in range(5):
                d = ACC + (tt * 5 + ct) * 4
                out.append("v_mfma_f32_16x16x32_bf16 %s, %s, %s, %s" % (vr(d, 4), vr(fs + 4 * ct, 4), vr(fs + 20 + 4 * tt, 4), vr(d, 4)))
        return out

    for st in range(NS - 1):
        for l in dma_stage(st): a(l)
    a("s_waitcnt vmcnt(%d)" % (9 * (NS - 2)))
    for l in frag_reads(0): a(l)
    for l in dma_stage(NS - 1): a(l)
    issued = NS
    for i in range(NK):
        if i + 1 < NK:
            outstanding_after = (issued - (i + 2)) * 9
            a("s_waitcnt vmcnt(%d)" % outstanding_after)
            for l in frag_reads(i + 1): a(l)
            a("s_waitcnt lgkmcnt(14)")
        else:
            a("s_waitcnt lgkmcnt(0)")
        m = mfmas(i)
        if 'nomfma' in EXP: m = m[:1]
        d = dma_stage(i + NS) if i + NS < NK else []
        if d: issued += 1
        di = 0
        for j, l in enumerate(m):
            a(l)
            take = 2
            while take > 0 and di < len(d):
                a(d[di]); di += 1; take -= 1
        while di < len(d):
            a(d[di]); di += 1
    a.nop(10)
    a("v_and_b32 v9, 15, v2")
    a("v_mul_u32_u24 v9, 336, v9")
    a("v_lshl_add_u32 v9, v3, 4, v9")
    a("v_add_u32 v9, s38, v9")
    for tt in range(4):
        for ct in range(5):
            d = ACC + (tt * 5 + ct) * 4
            a("ds_write_b128 v9, %s offset:%d" % (vr(d, 4), tt * 16 * 336 + ct * 64))
    a("s_waitcnt lgkmcnt(0)")
    a("s_barrier")
    a("s_mul_i32 s39, s33, %d" % (64 * 1280))
    a("s_mul_i32 s40, s34, 160")
    a("s_add_u32 s39, s39, s40")
    for it in range(5):
        b = 32 + it * 24
        a("v_add_u32 v9, %d, v0" % (256 * it))
        a("v_mul_u32_u24 v10, 3277, v9")
        a("v_lshrrev_b32 v10, 16, v10")
        a("v_mul_u32_u24 v11, 20, v10")
        a("v_sub_u32 v11, v9, v11")
        a("v_mul_u32_u24 v9, 336, v10")
        a("v_lshl_add_u32 v9, v11, 4, v9")
        a("v_mul_u32_u24 v10, 1280, v10")
        a("v_lshl_add_u32 v%d, v11, 3, v10" % (b + 18))
        a("buffer_load_dwordx2 %s, v%d, s[24:27], s39 offen" % (vr(b + 16, 2), b + 18))
        a("v_add_u32 v10, %d, v9" % (2 * WREG))
        for w in range(4):
            a("ds_read_b128 %s, v%d offset:%d" % (vr(b + 4 * w, 4), 9 if w < 2 else 10, (w & 1) * WREG))
    for it in range(5):
        b = 32 + it * 24
        a("s_waitcnt vmcnt(%d) lgkmcnt(%d)" % (4 - it, min(15, (4 - it) * 4)))
        for j in range(4):
            a("v_add_f32 v%d, v%d, v%d" % (b + j, b + j, b + 4 + j))
            a("v_add_f32 v%d, v%d, v%d" % (b + 8 + j, b + 8 + j, b + 12 + j))
        a("v_lshlrev_b32 v%d, 16, v%d" % (b + 4, b + 16))
        a("v_and_b32 v%d, 0xffff0000, v%d" % (b + 5, b + 16))
        a("v_lshlrev_b32 v%d, 16, v%d" % (b + 6, b + 17))
        a("v_and_b32 v%d, 0xffff0000, v%d" % (b + 7, b + 17))
        for j in range(4):
            a("v_add_f32 v%d, v%d, v%d" % (b + j, b + j, b + 8 + j))
        for j in range(4):
            a("v_add_f32 v%d, v%d, v%d" % (b + j, b + j, b + 4 + j))
        a("v_cvt_pk_bf16_f32 v%d, v%d, v%d" % (b + 20, b, b + 1))
        a("v_cvt_pk_bf16_f32 v%d, v%d, v%d" % (b + 21, b + 2, b + 3))
        a("buffer_store_dwordx2 %s, v%d, s[28:31], s39 offen" % (vr(b + 20, 2), b + 18))
    a.label("L_k2_end")
    a("s_endpgm")
    return dict(name=name, vgpr=184, sgpr=48, grid=256, block=256, lds=4 * WREG)
```

```python
import sys
from asmlib import *
import k2, k1, k15
NAME = "parallel_sum__linear_kernel_hedgehog__glu_gated_geglu__prompt"
def build(kernels, path):
    a = Asm()
    infos = [k(a) for k in kernels]
    hdr = open("cdna_kernels/%s.s.ref" % NAME).read().split("\n")
    head = [l for l in hdr if l.startswith(";") and "@launch" not in l]
    out = "\n".join(head) + "\n"
    for i in infos:
        out += "; @launch kernel=%s grid=(%d,1,1) block=(%d,1,1) lds=%d\n" % (i["name"], i["grid"], i["block"], i["lds"])
    out += '.amdgcn_target "amdgcn-amd-amdhsa--gfx950"\n.text\n'
    out += a.text()
    out += '.section .rodata,"a"\n'
    for i in infos:
        out += ".p2align 6\n" + kernel_desc(i["name"], i["vgpr"], i["sgpr"], i.get("accum"))
    open(path, "w").write(out)
if __name__ == "__main__":
    which = sys.argv[1]
    ks = {"k2": [k2.gen_k2], "k1": [k1.gen_k1], "all": [k1.gen_k1, k2.gen_k2]}[which]
    build(ks, sys.argv[2])
```

```python
from asmlib import *
from layout import *
import os
EXP = os.environ.get('K1EXP', '')

class Vm:
    def __init__(self, a):
        self.a = a; self.q = []
    def issue(self, tag):
        self.q.append(tag)
    def wait(self, tags, extra=""):
        if isinstance(tags, str): tags = [tags]
        idxs = [i for i, t in enumerate(self.q) if t in tags]
        if not idxs:
            if extra: self.a("s_waitcnt" + extra)
            return
        idx = max(idxs)
        n = len(self.q) - 1 - idx
        self.a("s_waitcnt vmcnt(%d)%s" % (min(n, 63), extra))
        self.q = self.q[idx + 1:] if n <= 63 else self.q[len(self.q) - 63:]

LOG2E = 0x3fb8aa3b
STAMP = 'stamp' in EXP
def gen_k1(a):
    nst = [0]
    def stamp():
        if not STAMP: return
        a("s_memtime s[%d:%d]" % (78 + 2 * nst[0], 79 + 2 * nst[0]))
        nst[0] += 1
    name = "k1_kernel"
    kernel_begin(a, name)
    WSL = 20480; XS = 4 * WSL
    IMG = XS + 3 * 16384
    CS = IMG + 15360
    STT = CS + 1536
    CNT = STT + 1024
    LDS = CNT + 64
    TI = 0
    ACC = 64
    NEGM, RSTD = 12, 14
    TRB0, TRB1, VWA, VWF, VX0, VX1, XR0, ST2, CSV, TMP = 236, 237, 238, 239, 240, 241, 242, 246, 248, 252
    a("s_cmp_ge_u32 s2, 256")
    a("s_cbranch_scc1 L_k1_end")
    stamp()
    if STAMP: a("s_memrealtime s[98:99]")
    a("s_load_dwordx4 s[4:7], s[0:1], 0")
    a("s_load_dwordx2 s[10:11], s[0:1], 40")
    a("s_load_dwordx2 s[12:13], s[0:1], 48")
    a("s_load_dwordx2 s[8:9], s[0:1], 16")
    a("s_load_dwordx2 s[14:15], s[0:1], 80")
    a("s_load_dwordx2 s[58:59], s[0:1], 72")
    a("v_lshrrev_b32 v2, 6, v0")
    a("v_and_b32 v1, 63, v0")
    a("s_nop 0")
    a("v_readfirstlane_b32 s40, v2")
    a("s_and_b32 s42, s2, 7")
    a("s_lshr_b32 s43, s2, 7")
    a("s_lshl_b32 s43, s43, 3")
    a("s_or_b32 s42, s42, s43")
    a("s_bfe_u32 s41, s2, 0x40003")
    a("s_and_b32 s60, s40, 3")
    a("s_lshr_b32 s61, s40, 2")
    a("v_lshrrev_b32 v3, 5, v1")
    a("v_and_b32 v4, 31, v1")
    a("v_lshrrev_b32 v5, 2, v1")
    a("v_and_b32 v6, 3, v1")
    a("s_lshl_b32 s43, s60, 2")
    a("v_add_u32 v7, s43, v6")
    a("v_min_u32 v7, 14, v7")
    a("v_mul_u32_u24 v8, 13, v7")
    a("v_lshrrev_b32 v8, 6, v8")
    a("v_mul_u32_u24 v9, 5, v8")
    a("v_sub_u32 v9, v7, v9")
    a("v_lshrrev_b32 v10, 1, v8")
    a("v_sub_u32 v10, 1, v10")
    a("v_xor_b32 v8, v8, v10")
    a("v_mul_u32_u24 v8, 1280, v8")
    a("v_lshl_add_u32 v8, v9, 4, v8")
    a("v_mul_u32_u24 v9, 3840, v5")
    a("s_mul_i32 s43, s42, 80")
    a("v_add3_u32 v%d, v8, v9, s43" % VWA)
    a("v_mul_u32_u24 v9, 3072, v5")
    a("v_lshl_add_u32 v9, v6, 4, v9")
    a("s_mul_i32 s43, s42, 192")
    a("v_add_u32 v%d, s43, v9" % VWF)
    a("v_lshrrev_b32 v5, 3, v1")
    a("v_and_b32 v6, 7, v1")
    a("v_lshrrev_b32 v7, 1, v5")
    a("v_xor_b32 v8, v6, v7")
    a("v_mul_u32_u24 v9, 1280, v5")
    a("v_lshl_add_u32 v%d, v8, 4, v9" % VX0)
    a("v_xor_b32 v8, 4, v8")
    a("v_lshl_add_u32 v%d, v8, 4, v9" % VX1)
    a("v_add_u32 v%d, %d, v%d" % (VX1, 8 * 1280, VX1))
    a("s_lshl_b32 s45, s41, 7")
    a("s_lshl_b32 s43, s40, 4")
    a("s_add_u32 s45, s45, s43")
    a("s_mul_i32 s45, s45, 1280")
    a("s_lshl_b32 s57, s40, 11")
    a("s_add_u32 s57, s57, %d" % XS)
    a("s_lshl_b32 s46, s60, 11")
    a("s_cmp_eq_u32 s60, 3")
    a("s_cselect_b32 s48, 0x77777777, -1")
    a("s_mov_b32 s49, s48")
    a("s_lshl_b32 s43, s60, 1")
    a("s_add_u32 s43, s43, 4")
    a("s_cmp_eq_u32 s61, 0")
    a("s_cselect_b32 s62, s60, s43")
    a("s_cmp_ge_u32 s41, 10")
    a("s_cselect_b32 s43, 10, 0")
    a("s_sub_u32 s43, s41, s43")
    if 'norot' in EXP: a("s_mov_b32 s43, 0")
    a("s_mul_i32 s66, s43, %d" % (64 * 3840))
    a("s_mul_i32 s67, s43, %d" % (64 * 3072))
    a("s_lshl_b32 s65, s43, 7")
    a("s_waitcnt lgkmcnt(0)")
    stamp()
    srd(a, 16, 4, 2048 * 1280)
    srd(a, 20, 6, 640 * 3840)
    for n in range(2):
        S = 24 + 4 * n
        a("s_add_u32 s43, s62, %d" % n)
        a("s_lshr_b32 s44, s43, 1")
        a("s_and_b32 s47, s43, 1")
        a("s_bitcmp1_b32 s44, 0")
        a("s_cselect_b32 s%d, s12, s10" % S)
        a("s_cselect_b32 s%d, s13, s11" % (S + 1))
        a("s_and_b32 s%d, s%d, 0xffff" % (S + 1, S + 1))
        a("s_mov_b32 s%d, %d" % (S + 2, 640 * 3072))
        a("s_mov_b32 s%d, 0x00020000" % (S + 3))
        a("s_mul_i32 s%d, s47, %d" % (72 + n, 16 * 3072))
        a("s_lshr_b32 s43, s44, 1")
        a("s_lshl_b32 s43, s43, 6")
        a("s_add_u32 s%d, s%d, s43" % (72 + n, 72 + n))
        a("s_lshl_b32 s%d, s44, 11" % (75 + n))
        a("s_lshl_b32 s43, s47, 10")
        a("s_add_u32 s%d, s%d, s43" % (75 + n, 75 + n))
        a("s_add_u32 s%d, s%d, 8192" % (75 + n, 75 + n))

    def dma_w(role, st):
        out = []; tag = "W%d" % st; slot = st % 4
        if role == 0:
            out.append("s_mov_b32 s44, s66")
            out.append("s_mov_b64 exec, s[48:49]")
            for j in range(2):
                out.append("s_add_u32 m0, s46, %d" % (slot * WSL + j * 1024))
                out.append("s_nop 0" if j == 0 else "s_add_u32 s44, s44, %d" % (16 * 3840))
                out.append(("buffer_load_dwordx4 v%d, s[20:23], s44 offen lds" % VWA, tag))
            out.append("s_mov_b64 exec, -1")
            out.append("s_add_u32 s66, s66, %d" % (32 * 3840))
            out.append("s_cmp_ge_u32 s66, %d" % (640 * 3840))
            out.append("s_cselect_b32 s66, 0, s66")
        for n in range(1 if role == 0 else 2):
            out.append("s_add_u32 m0, s%d, %d" % (75 + n, slot * WSL))
            out.append("s_add_u32 s44, s%d, s67" % (72 + n))
            out.append(("buffer_load_dwordx4 v%d, s[%d:%d], s44 offen lds" % (VWF, 24 + 4 * n, 27 + 4 * n), tag))
        out.append("s_add_u32 s67, s67, %d" % (32 * 3072))
        out.append("s_cmp_ge_u32 s67, %d" % (640 * 3072))
        out.append("s_cselect_b32 s67, 0, s67")
        return out
    def dma_x(xb):
        out = []; tag = "X%d" % xb; slot = xb % 3
        out.append("s_add_u32 s44, s45, s65")
        for g in range(2):
            out.append("s_add_u32 m0, s57, %d" % (slot * 16384 + g * 1024))
            out.append("s_nop 0")
            out.append(("buffer_load_dwordx4 v%d, s[16:19], s44 offen lds" % (VX0 + g), tag))
        out.append("s_add_u32 s65, s65, 128")
        out.append("s_cmp_ge_u32 s65, 1280")
        out.append("s_cselect_b32 s65, 0, s65")
        return out

    a("s_cmp_eq_u32 s61, 1")
    a("s_cbranch_scc1 L_k1_roleB")
    for role in range(2):
        vm = Vm(a)
        def emit(l):
            if isinstance(l, tuple):
                a(l[0]); vm.issue(l[1])
            elif l == "WAIT_CSP": vm.wait("CSP")
            elif l == "WAIT_POLL": vm.wait("POLL")
            else:
                a(l)
        if role == 1:
            a.label("L_k1_roleB")
        nt = 4 if role == 0 else 6
        t0 = 0 if role == 0 else 4
        WF = [16, 40]
        XF = [32, 56] if role == 0 else [160, 164]
        for l in dma_w(role, 0): emit(l)
        for l in dma_x(0): emit(l)
        for l in dma_w(role, 1): emit(l)
        if role == 0: stamp()
        srd(a, 32, 14, 32 * 1024 * 1024)
        srd(a, 36, 8, 32 * 800)
        a("v_lshlrev_b32 v5, 3, v3")
        a("v_bfe_u32 v6, v1, 2, 2")
        a("v_add_u32 v5, v5, v6")
        a("v_lshlrev_b32 v5, 6, v5")
        a("v_bfe_u32 v6, v1, 4, 1")
        a("v_lshl_add_u32 v5, v6, 5, v5")
        a("v_and_b32 v6, 3, v1")
        a("v_lshl_add_u32 v%d, v6, 3, v5" % TRB0)
        a("v_add_u32 v%d, %d, v%d" % (TRB1, 2 * WSL, TRB0))
        a("s_lshl_b32 s43, s60, 5")
        a("v_add_u32 v5, s43, v4")
        a("v_lshlrev_b32 v5, 7, v5")
        a("v_add_u32 v5, %d, v5" % XS)
        a("v_bfe_u32 v6, v4, 1, 3")
        for ks in range(4):
            a("v_add_u32 v7, %d, v3" % (2 * ks))
            a("v_xor_b32 v7, v7, v6")
            a("v_lshl_add_u32 v%d, v7, 4, v5" % (XR0 + ks))
        a("s_lshl_b32 s63, s60, 2")
        a("s_add_u32 s64, s60, 4")
        a("s_min_u32 s64, s64, 5")
        a("s_lshl_b32 s64, s64, 2")
        if role == 0:
            a("s_mul_i32 s43, s42, 1600")
            PH = 64
            for it in range(7):
                a("v_add_u32 v5, %d, v0" % (256 * it))
                a("v_min_u32 v5, 1599, v5")
                a("v_mul_u32_u24 v6, 1311, v5")
                a("v_lshrrev_b32 v%d, 19, v6" % (72 + it))
                a("v_mul_u32_u24 v7, 400, v%d" % (72 + it))
                a("v_sub_u32 v%d, v5, v7" % (80 + it))
                a("v_and_b32 v8, 1, v%d" % (72 + it))
                a("v_mul_u32_u24 v8, 400, v8")
                a("v_add_u32 v8, v8, v%d" % (80 + it))
                a("v_lshlrev_b32 v8, 1, v8")
                a("buffer_load_ushort v%d, v8, s[36:39], s43 offen" % (PH + it))
                vm.issue("PH")
            for it in range(7):
                sl = 72 + it; rem = 80 + it
                a("v_mul_u32_u24 v8, 3277, v%d" % rem)
                a("v_lshrrev_b32 v8, 16, v8")
                a("v_mul_u32_u24 v9, 20, v8")
                a("v_sub_u32 v9, v%d, v9" % rem)
                a("v_and_b32 v10, 1, v%d" % sl)
                a("v_mul_u32_u24 v10, 5, v10")
                a("v_lshrrev_b32 v11, 2, v9")
                a("v_add_u32 v10, v10, v11")
                a("v_lshlrev_b32 v10, 3, v10")
                a("v_lshrrev_b32 v11, 1, v%d" % sl)
                a("v_lshl_add_u32 v10, v11, 2, v10")
                a("v_and_b32 v11, 3, v9")
                a("v_add_u32 v10, v10, v11")
                a("v_mul_u32_u24 v10, 160, v10")
                a("v_mul_u32_u24 v11, 20, v%d" % sl)
                a("v_add_u32 v11, v11, v8")
                a("v_and_b32 v13, 0x73, v11")
                a("v_bfe_u32 v14, v11, 2, 1")
                a("v_lshl_add_u32 v13, v14, 3, v13")
                a("v_bfe_u32 v14, v11, 3, 1")
                a("v_lshl_add_u32 v13, v14, 2, v13")
                a("v_lshl_add_u32 v10, v13, 1, v10")
                a("v_add_u32 v%d, %d, v10" % (88 + it, IMG))
        else:
            a("v_mov_b32 v8, 0"); a("v_mov_b32 v9, 0"); a("v_mov_b32 v10, 0"); a("v_mov_b32 v11, 0")
            a("v_subrev_u32 v7, 256, v0")
            a("v_lshlrev_b32 v5, 4, v7")
            a("v_add_u32 v5, %d, v5" % IMG)
            for i in range(3):
                a("ds_write_b128 v5, v[8:11] offset:%d" % (i * 4096))
            a("v_cmp_gt_u32 vcc, 192, v7")
            a("s_and_saveexec_b64 s[50:51], vcc")
            a("ds_write_b128 v5, v[8:11] offset:%d" % (3 * 4096))
            a("s_mov_b64 exec, s[50:51]")
            a("v_mov_b32 v5, %d" % CNT)
            a("ds_write_b64 v5, v[8:9]")
            a("ds_write_b64 v5, v[8:9] offset:8")
            lz = a.newlabel("nozero")
            a("s_cmp_lg_u32 s41, 0")
            a("s_cbranch_scc1 %s" % lz)
            a("s_lshl_b32 s43, s42, 14")
            a("s_add_u32 s43, s43, %d" % KVA_OFF)
            a("v_lshlrev_b32 v5, 4, v7")
            for i in range(4):
                a("buffer_store_dwordx4 v[8:11], v5, s[32:35], s43 offen sc1")
                a("s_add_u32 s43, s43, 4096")
            a("s_waitcnt vmcnt(0)")
            a.label(lz)
            a("v_lshrrev_b32 v5, 5, v7")
            a("v_mul_u32_u24 v5, %d, v5" % WSL)
            a("v_lshl_add_u32 v5, v4, 6, v5")
            a("v_add_u32 v5, %d, v5" % (3 * 2048 + 48))
            a("v_mov_b32 v8, 0x3f80")
            a("v_cmp_gt_u32 vcc, 128, v7")
            a("s_and_saveexec_b64 s[50:51], vcc")
            a("ds_write_b128 v5, v[8:11]")
            a("s_mov_b64 exec, s[50:51]")
        for i in range(6):
            a("v_mov_b32 v%d, 0" % (ST2 + i))

        srd(a, 52, 58, 256) if False else None
        a("s_mov_b32 s52, s58")
        a("s_and_b32 s53, s59, 0xffff")
        a("s_mov_b32 s54, 256")
        a("s_mov_b32 s55, 0x00020000")
        a("s_lshl_b32 s56, s42, 2")
        a("s_add_u32 s56, s56, 128")
        a("s_lshl_b32 s43, s42, 4")
        a("s_mul_i32 s50, s43, 1536")
        a("s_add_u32 s50, s50, %d" % CSP_OFF)
        a("s_mul_i32 s51, s41, 1536")
        a("s_add_u32 s51, s51, s50")
        a("s_lshl_b32 s43, s60, 7")
        a("s_add_u32 s51, s51, s43")
        if role: a("s_add_u32 s51, s51, 512")
        a("v_lshlrev_b32 v235, 6, v2")
        a("v_add_u32 v235, v235, v1")
        a("v_min_u32 v235, 319, v235")
        a("v_lshlrev_b32 v235, 2, v235")
        def publish():
            out = []
            for k in range(1 if role == 0 else 2):
                out.append("v_add_f32 v%d, v%d, v%d" % (CSV + 2 * k, CSV + 2 * k, CSV + 2 * k + 1))
                out.append("v_mov_b32 v%d, v%d" % (CSV + 2 * k + 1, CSV + 2 * k))
                out.append("s_nop 1")
                out.append("v_permlane32_swap_b32 v%d, v%d" % (CSV + 2 * k + 1, CSV + 2 * k))
                out.append("s_nop 1")
                out.append("v_add_f32 v%d, v%d, v%d" % (CSV + 2 * k, CSV + 2 * k, CSV + 2 * k + 1))
                out.append("v_lshlrev_b32 v%d, 2, v4" % TMP)
                out.append(("buffer_store_dword v%d, v%d, s[32:35], s51 offen offset:%d sc1" % (CSV + 2 * k, TMP, 512 * k), "CSP"))
            return out
        def signal():
            if role: return []
            out = []
            out.append("s_cmp_lt_u32 s41, 10")
            out.append("s_cselect_b32 s43, 1, 0")
            out.append("s_cmp_eq_u32 s40, 0")
            out.append("s_cselect_b32 s43, s43, 0")
            out.append("v_mov_b32 v%d, 1" % TMP)
            out.append("v_mov_b32 v%d, 0" % (TMP + 1))
            out.append("s_mov_b32 exec_lo, s43")
            out.append("s_mov_b32 exec_hi, 0")
            out.append(("buffer_atomic_add v%d, v%d, s[52:55], s56 offen sc1" % (TMP, TMP + 1), "SIG"))
            out.append("s_mov_b64 exec, -1")
            return out
        def poll():
            return ["v_mov_b32 v%d, 0" % (TMP + 1), ("buffer_load_dword v234, v%d, s[52:55], s56 offen sc1" % (TMP + 1), "POLL")]
        def gather(inloop):
            out = []
            if inloop:
                out.append("WAIT_POLL")
                out.append("v_readfirstlane_b32 s47, v234")
            out.append("s_mov_b32 s43, s50")
            for i in range(10):
                out.append(("buffer_load_dword v%d, v235, s[32:35], s43 offen sc1" % (224 + i), "GAT"))
                if i < 9: out.append("s_add_u32 s43, s43, 1536")
            return out
        def frag_reads(st, kk, par):
            fs = WF[par]; slot = st % 4
            base = TRB0 if slot < 2 else TRB1
            out = ["ds_read_b128 %s, v%d offset:%d" % (vr(XF[par], 4), XR0 + 2 * (st & 1) + kk, ((st >> 1) % 3) * 16384)]
            for t in range(nt):
                for rd in range(2):
                    out.append("ds_read_b64_tr_b16 %s, v%d offset:%d" % (vr(fs + 4 * t + 2 * rd, 2), base, (slot & 1) * WSL + (t0 + t) * 2048 + kk * 1024 + rd * 256))
            return out
        if role == 0: stamp()
        vm.wait(["W0", "X0"], " lgkmcnt(0)")
        a("s_barrier")
        if role == 0: stamp()
        for l in frag_reads(0, 0, 0): a(l)
        if role == 0:
            vm.wait("PH")
            for it in range(7):
                a("ds_write_b16 v%d, v%d" % (88 + it, 64 + it))
            a("s_nop 1")
        for i in range(16 * nt):
            a("v_mov_b32 v%d, 0" % (ACC + i))
        for st in range(20):
            for kk in range(2):
                g = st * 2 + kk
                par = g & 1
                cur = WF[par]
                a("s_waitcnt lgkmcnt(0)")
                bar = False; rd = []; dm = []
                if kk == 0:
                    rd = frag_reads(st, 1, par ^ 1)
                    if st == 0: dm = dma_x(1) + dma_w(role, 2)
                    if st == 1: dm = dma_x(2)
                elif st < 19:
                    bar = True
                    rd = frag_reads(st + 1, 0, par ^ 1)
                    if st == 0: dm = dma_w(role, 3)
                    if st + 4 < 20: dm = dm + dma_w(role, st + 4)
                    if (st & 1) and (st >> 1) + 3 < 10: dm = dm + dma_x((st >> 1) + 3)
                groups = []
                for k in range((1 if role == 0 else 2) if g < 4 else 0):
                    for dd in range(2):
                        gq = ["s_set_gpr_idx_on s%d, 0x2" % (63 + k)]
                        for d in (2 * dd, 2 * dd + 1):
                            gq.append("v_lshlrev_b32 v%d, 16, v%d" % (TMP + 2 * (d & 1), cur + d))
                            gq.append("v_and_b32 v%d, 0xffff0000, v%d" % (TMP + 2 * (d & 1) + 1, cur + d))
                        gq.append("s_set_gpr_idx_off")
                        for d in range(2):
                            gq.append("v_pk_add_f32 %s, %s, %s" % (vr(CSV + 2 * k, 2), vr(CSV + 2 * k, 2), vr(TMP + 2 * d, 2)))
                        groups.append(gq)
                if role == 0:
                    xt = XF[par]
                    for dd in range(2):
                        gq = []
                        for d in (2 * dd, 2 * dd + 1):
                            gq.append("v_lshlrev_b32 v%d, 16, v%d" % (TMP + 2 * (d & 1), xt + d))
                            gq.append("v_and_b32 v%d, 0xffff0000, v%d" % (TMP + 2 * (d & 1) + 1, xt + d))
                        for d in range(2):
                            gq.append("v_pk_fma_f32 %s, %s, %s, %s" % (vr(ST2, 2), vr(TMP + 2 * d, 2), vr(TMP + 2 * d, 2), vr(ST2, 2)))
                        groups.append(gq)
                if 'nodot' in EXP: groups = []
                if 'nodma' in EXP: dm = []
                if 'notr' in EXP: rd = rd[:1]
                slots = [[] for _ in range(nt)]
                first = 1 if bar else 0
                nrs = 3 if role else 2
                per = (len(rd) + nrs - 1) // nrs if rd else 0
                for i, l in enumerate(rd):
                    slots[first + i // per].append(l)
                for i, gq in enumerate(groups):
                    slots[(nt - 4 + i) if role else (i if g < 4 else 2 + i)].extend(gq)
                if 'noshare' in EXP: pass
                elif g == 4: slots[0].extend(publish())
                elif g == 9: slots[nt - 1].extend(signal())
                elif g == 29: slots[nt - 1].extend(poll())
                elif g == 33: slots[nt - 1].extend(gather(True))
                if dm:
                    slots[nt - 1].extend(dm)
                for t in range(nt):
                    d = ACC + 16 * t
                    a("v_mfma_f32_32x32x16_bf16 %s, %s, %s, %s" % (vr(d, 16), vr(cur + 4 * t, 4), vr(XF[par], 4), vr(d, 16)))
                    if t == 0 and bar:
                        need = ["W%d" % (st + 1)] + (["X%d" % ((st + 1) >> 1)] if (st & 1) else [])
                        if g == 9: need.append("CSP")
                        vm.wait(need)
                        a("s_barrier")
                    for l in slots[t]:
                        emit(l)
        if role == 0: stamp()
        lab = a.newlabel("gok"); lp = a.newlabel("gpoll")
        if 'noshare' in EXP: a("s_mov_b32 s47, 10")
        a("s_cmp_ge_u32 s47, 10")
        a("s_cbranch_scc1 %s" % lab)
        a.label(lp)
        a("v_mov_b32 v%d, 0" % (TMP + 1))
        a("buffer_load_dword v234, v%d, s[52:55], s56 offen sc1" % (TMP + 1))
        a("s_waitcnt vmcnt(0)")
        a("v_readfirstlane_b32 s47, v234")
        a("s_nop 3")
        a("s_cmp_ge_u32 s47, 10")
        a("s_cbranch_scc0 %s" % lp)
        for l in gather(False):
            a(l[0] if isinstance(l, tuple) else l)
        a.label(lab)
        a("v_add_f32 v%d, v%d, v%d" % (ST2, ST2, ST2 + 1))
        a("s_waitcnt vmcnt(0)")
        vm.q = []
        for i in range(0, 10, 2):
            a("v_add_f32 v%d, v%d, v%d" % (224 + i, 224 + i, 225 + i))
        a("v_add_f32 v224, v224, v226")
        a("v_add_f32 v228, v228, v230")
        a("v_add_f32 v224, v224, v232")
        a("v_add_f32 v224, v224, v228")
        a("v_add_u32 v9, %d, v235" % CS)
        a("ds_write_b32 v9, v224")
        a("s_lshl_b32 s43, s60, 8")
        a("s_add_u32 s43, s43, %d" % STT)
        a("v_lshlrev_b32 v11, 3, v4")
        a("v_add_u32 v11, s43, v11")
        a("v_lshlrev_b32 v10, 4, v3")
        a("v_add_u32 v10, %d, v10" % (CS + t0 * 128))
        def lnfix(accreg, csreg, n):
            for i in range(0, n, 2):
                a("v_pk_fma_f32 %s, %s, %s, %s" % (vr(accreg + i, 2), vr(NEGM, 2), vr(csreg + i, 2), vr(accreg + i, 2)))
            for i in range(0, n, 2):
                a("v_pk_mul_f32 %s, %s, %s" % (vr(accreg + i, 2), vr(RSTD, 2), vr(accreg + i, 2)))
        if role == 0:
            a.nop(6)
            a("v_mov_b32 v8, v%d" % ST2)
            a("v_mov_b32 v5, v%d" % (ACC + 60))
            a("v_mov_b32 v6, v%d" % (ACC + 60))
            a("s_nop 1")
            a("v_permlane32_swap_b32 v8, v%d" % ST2)
            a("v_permlane32_swap_b32 v5, v6")
            a("s_nop 1")
            a("v_add_f32 v%d, v8, v%d" % (ST2, ST2))
            a("v_mov_b32 v8, 0x3acccccd")
            a("v_mul_f32 v12, v5, v8")
            a("v_mul_f32 v13, v%d, v8" % ST2)
            a("v_fma_f32 v13, -v12, v12, v13")
            a("v_max_f32 v13, 0, v13")
            a("v_cvt_pk_bf16_f32 v14, v12, v13")
            a("v_lshlrev_b32 v12, 16, v14")
            a("v_and_b32 v13, 0xffff0000, v14")
            a("v_add_f32 v13, 0x3727c5ac, v13")
            a("v_cvt_pk_bf16_f32 v14, v13, v13")
            a("v_and_b32 v13, 0xffff0000, v14")
            a("v_sqrt_f32 v13, v13")
            a("s_nop 0")
            a("v_cvt_pk_bf16_f32 v14, v13, v13")
            a("v_and_b32 v13, 0xffff0000, v14")
            a("v_rcp_f32 v14, v13")
            a("v_sub_f32 v13, 0, v12")
            a("v_mov_b32 v12, v13")
            a("v_mov_b32 v15, v14")
            a("ds_write_b64 v11, v[13:14]" if False else "ds_write_b32 v11, v13")
            a("ds_write_b32 v11, v14 offset:4")
            a("s_waitcnt lgkmcnt(0)")
            a("s_barrier")
            CQ = 160
            for t in range(4):
                for q in range(4):
                    if t == 3 and q == 3: continue
                    a("ds_read_b128 %s, v10 offset:%d" % (vr(CQ + 16 * t + 4 * q, 4), t * 128 + q * 32))
            a("v_mul_u32_u24 v9, 160, v4")
            a("v_lshl_add_u32 v9, v3, 4, v9")
            a("v_add_u32 v9, %d, v9" % IMG)
            a("s_waitcnt lgkmcnt(0)")
            lnfix(ACC, CQ, 60)
            for i in range(30):
                a("v_cvt_pk_bf16_f32 v%d, v%d, v%d" % (16 + i, ACC + 2 * i, ACC + 2 * i + 1))
            for tp in range(3):
                for s in range(5):
                    a("ds_read_b128 %s, v9 offset:%d" % (vr(160 + 4 * (tp * 5 + s), 4), tp * 32 * 160 + s * 32))
            for i in range(48):
                a("v_mov_b32 v%d, 0" % (64 + i))
            a("s_lshl_b32 s43, s60, 5")
            a("v_add_u32 v11, s43, v4")
            a("v_mul_u32_u24 v11, 288, v11")
            a("v_add_u32 v11, %d, v11" % TI)
            a("v_lshl_add_u32 v10, v3, 3, v11")
            a("s_waitcnt lgkmcnt(0)")
            for s in range(5):
                for tp in range(3):
                    a("v_mfma_f32_32x32x16_bf16 %s, %s, %s, %s" % (vr(64 + 16 * tp, 16), vr(160 + 4 * (tp * 5 + s), 4), vr(16 + 4 * s, 4), vr(64 + 16 * tp, 16)))
            for i in range(5):
                a("ds_write_b64 v10, %s offset:%d" % (vr(36 + 2 * i, 2), 160 + 16 * i))
            a("s_mov_b32 s50, 0"); a("s_mov_b32 s51, -1")
            a("s_mov_b32 s52, -1"); a("s_mov_b32 s53, 0")
            a("s_lshl_b32 s43, s41, 4")
            a("s_add_u32 s43, s43, s42")
            a("s_lshl_b32 s43, s43, 2")
            a("s_add_u32 s43, s43, s60")
            a("s_mul_i32 s47, s43, 5120")
            a("s_add_u32 s47, s47, %d" % PHIQ_OFF)
            a("v_mul_u32_u24 v9, 160, v4")
            a("v_mov_b32 v16, 0x%x" % LOG2E)
            a("v_mov_b32 v17, 0x%x" % LOG2E)
            a("v_mov_b32 v20, 0x3f80"); a("v_mov_b32 v21, 0"); a("v_mov_b32 v22, 0"); a("v_mov_b32 v23, 0")
            a("s_mov_b64 exec, s[52:53]")
            a("ds_write_b128 v11, v[20:23] offset:240")
            a("s_mov_b64 exec, -1")
            a.nop(8)
            for i in range(0, 40, 2):
                a("v_cvt_pk_bf16_f32 v%d, v%d, v%d" % (112 + i // 2, 64 + i, 65 + i))
            for i in range(0, 40, 2):
                a("v_lshlrev_b32 v%d, 16, v%d" % (64 + i, 112 + i // 2))
                a("v_and_b32 v%d, 0xffff0000, v%d" % (65 + i, 112 + i // 2))
            for hs in range(2):
                X = 64 + 20 * hs
                mx, mn = 24 + 4 * hs, 26 + 4 * hs
                a("v_max3_f32 v%d, v%d, v%d, v%d" % (mx, X, X + 1, X + 2))
                a("v_min3_f32 v%d, v%d, v%d, v%d" % (mn, X, X + 1, X + 2))
                for i in range(3, 19, 2):
                    a("v_max3_f32 v%d, v%d, v%d, v%d" % (mx, mx, X + i, X + i + 1))
                    a("v_min3_f32 v%d, v%d, v%d, v%d" % (mn, mn, X + i, X + i + 1))
                a("v_max_f32 v%d, v%d, v%d" % (mx, mx, X + 19))
                a("v_min_f32 v%d, v%d, v%d" % (mn, mn, X + 19))
                a("v_mul_f32 v%d, v%d, v16" % (mx, mx))
                a("v_mul_f32 v%d, v%d, v16" % (mn, mn))
                a("v_sub_f32 v%d, 0, v%d" % (mx, mx))
                a("v_mov_b32 v%d, v%d" % (mx + 1, mx))
                a("v_mov_b32 v%d, v%d" % (mn + 1, mn))
            for hs in range(2):
                X = 64 + 20 * hs
                mx, mn = 24 + 4 * hs, 26 + 4 * hs
                for sign in range(2):
                    E = 160 + 40 * hs + 20 * sign
                    for i in range(0, 20, 2):
                        if sign == 0:
                            a("v_pk_fma_f32 %s, %s, v[16:17], %s" % (vr(E + i, 2), vr(X + i, 2), vr(mx, 2)))
                        else:
                            a("v_pk_fma_f32 %s, %s, v[16:17], %s neg_lo:[1,0,0] neg_hi:[1,0,0]" % (vr(E + i, 2), vr(X + i, 2), vr(mn, 2)))
            for i in range(80):
                a("v_exp_f32 v%d, v%d" % (160 + i, 160 + i))
            a("s_nop 0")
            for gi in range(4):
                E = 160 + 20 * gi; S = 32 + 2 * gi
                a("v_pk_add_f32 %s, %s, %s" % (vr(S, 2), vr(E, 2), vr(E + 2, 2)))
                for i in range(4, 20, 2):
                    a("v_pk_add_f32 %s, %s, %s" % (vr(S, 2), vr(S, 2), vr(E + i, 2)))
            for gi in range(4):
                S = 32 + 2 * gi
                a("v_add_f32 v%d, v%d, v%d" % (S, S, S + 1))
            for gi in range(4):
                S = 32 + 2 * gi
                a("v_rcp_f32 v%d, v%d" % (S, S))
            a("s_nop 0")
            for gi in range(4):
                S = 32 + 2 * gi
                a("v_mov_b32 v%d, v%d" % (S + 1, S))
            for gi in range(4):
                E = 160 + 20 * gi; S = 32 + 2 * gi
                for i in range(0, 20, 2):
                    a("v_pk_mul_f32 %s, %s, %s" % (vr(E + i, 2), vr(E + i, 2), vr(S, 2)))
            for i in range(40):
                a("v_cvt_pk_bf16_f32 v%d, v%d, v%d" % (64 + i, 160 + 2 * i, 161 + 2 * i))
            a("s_mov_b64 exec, s[52:53]")
            for i in range(10):
                a("ds_write_b128 v11, %s offset:%d" % (vr(64 + 4 * i, 4), 16 * i))
            a("s_mov_b64 exec, -1")
            a("s_nop 1")
            for i in range(20):
                a("v_permlane32_swap_b32 v%d, v%d" % (64 + i, 84 + i))
            stamp()
            a("v_lshrrev_b32 v5, 4, v1")
            a("v_bfe_u32 v6, v1, 2, 2")
            a("v_lshl_add_u32 v5, v5, 2, v6")
            a("v_mul_u32_u24 v5, 288, v5")
            a("v_and_b32 v6, 3, v1")
            a("v_lshl_add_u32 v5, v6, 3, v5")
            a("v_add_u32 v5, %d, v5" % TI)
            a("s_lshl_b32 s47, s42, 14")
            a("s_add_u32 s47, s47, %d" % KVA_OFF)
            a("v_lshlrev_b32 v8, 4, v1")
            def lsync(idx):
                lp = a.newlabel("lsync")
                a("v_mov_b32 v6, %d" % (CNT + 4 * idx))
                a("v_mov_b32 v7, 1")
                a("s_waitcnt lgkmcnt(0)")
                a("s_mov_b64 exec, 1")
                a("ds_add_u32 v6, v7")
                a("s_mov_b64 exec, -1")
                a.label(lp)
                a("ds_read_b32 v7, v6")
                a("s_waitcnt lgkmcnt(0)")
                a("v_readfirstlane_b32 s43, v7")
                a("s_nop 3")
                a("s_cmp_lt_u32 s43, 4")
                a("s_cbranch_scc1 %s" % lp)
            lsync(0)
            for jj in range(4):
                a("s_add_u32 s54, s60, %d" % (4 * jj))
                a("s_min_u32 s54, s54, 14")
                a("s_mul_i32 s55, s54, 11")
                a("s_lshr_b32 s55, s55, 5")
                a("s_mul_i32 s56, s55, 3")
                a("s_sub_u32 s56, s54, s56")
                a("s_lshl_b32 s55, s55, 5")
                a("s_lshl_b32 s56, s56, 5")
                a("s_add_u32 s56, s56, 160")
                a("v_add_u32 v6, s55, v5")
                a("v_add_u32 v7, s56, v5")
                B = 104 + 32 * jj
                for kt in range(4):
                    for rd in range(2):
                        a("ds_read_b64_tr_b16 %s, v6 offset:%d" % (vr(B + 8 * kt + 2 * rd, 2), (32 * kt + 16 * rd) * 288))
                        a("ds_read_b64_tr_b16 %s, v7 offset:%d" % (vr(B + 4 + 8 * kt + 2 * rd, 2), (32 * kt + 16 * rd) * 288))
                a("s_lshl_b32 s54, s54, 10")
                a("s_add_u32 s%d, s54, s47" % (68 + jj))
            for e in range(16):
                a("v_mov_b32 v%d, 0" % (16 + e))
            a("s_waitcnt lgkmcnt(0)")
            for kt in range(4):
                for jj in range(4):
                    B = 104 + 32 * jj
                    a("v_mfma_f32_16x16x32_bf16 %s, %s, %s, %s" % (vr(16 + 4 * jj, 4), vr(B + 8 * kt, 4), vr(B + 4 + 8 * kt, 4), vr(16 + 4 * jj, 4)))
            a.nop(8)
            a("v_lshlrev_b32 v9, 4, v1")
            for jj in range(4):
                if jj == 3:
                    lsk = a.newlabel("noat")
                    a("s_cmp_eq_u32 s60, 3")
                    a("s_cbranch_scc1 %s" % lsk)
                for e in range(4):
                    a("buffer_atomic_add_f32 v%d, v9, s[32:35], s%d offen offset:%d" % (16 + 4 * jj + e, 68 + jj, 4 * e))
                if jj == 3: a.label(lsk)
            a("v_mov_b32 v32, 0"); a("v_mov_b32 v33, 0"); a("v_mov_b32 v34, 0"); a("v_mov_b32 v35, 0")
            a("v_lshlrev_b32 v5, 4, v0")
            a("v_add_u32 v5, %d, v5" % IMG)
            a("ds_write_b128 v5, v[32:35]")
            a("ds_write_b128 v5, v[32:35] offset:4096")
            a("ds_write_b128 v5, v[32:35] offset:8192")
            a("s_waitcnt vmcnt(0)")
            lsync(1)
            a("s_mov_b32 s52, s58")
            a("s_and_b32 s53, s59, 0xffff")
            a("s_mov_b32 s54, 256")
            a("s_mov_b32 s55, 0x00020000")
            a("s_lshl_b32 s56, s42, 2")
            a("s_add_u32 s56, s56, 192")
            a("v_mov_b32 v6, 1")
            a("v_mov_b32 v7, 0")
            a("s_cmp_eq_u32 s40, 0")
            a("s_cselect_b32 s43, 1, 0")
            a("s_mov_b32 exec_lo, s43")
            a("s_mov_b32 exec_hi, 0")
            a("buffer_atomic_add v6, v7, s[52:55], s56 offen sc1")
            a("s_mov_b64 exec, -1")
            lp = a.newlabel("kpoll")
            a.label(lp)
            a("s_sleep 2")
            a("buffer_load_dword v6, v7, s[52:55], s56 offen sc1")
            a("s_waitcnt vmcnt(0)")
            a("v_readfirstlane_b32 s43, v6")
            a("s_nop 3")
            a("s_cmp_lt_u32 s43, 16")
            a("s_cbranch_scc1 %s" % lp)
            for jj in range(4):
                a("buffer_load_dwordx4 %s, v9, s[32:35], s%d offen sc1" % (vr(16 + 4 * jj, 4), 68 + jj))
            for jj in range(4):
                B = 16 + 4 * jj
                a("s_add_u32 s54, s60, %d" % (4 * jj))
                a("s_min_u32 s54, s54, 14")
                a("s_mul_i32 s55, s54, 11")
                a("s_lshr_b32 s55, s55, 5")
                a("s_mul_i32 s56, s55, 3")
                a("s_sub_u32 s56, s54, s56")
                a("s_lshl_b32 s55, s55, 4")
                a("s_lshl_b32 s56, s56, 4")
                a("v_and_b32 v39, 15, v1")
                a("v_add_u32 v39, s56, v39")
                a("v_lshrrev_b32 v40, 4, v1")
                a("v_lshlrev_b32 v40, 2, v40")
                a("v_add_u32 v40, s55, v40")
                a("v_cmp_le_u32 vcc, 40, v40")
                a("s_nop 1")
                a("v_cndmask_b32 v41, 0, 1, vcc")
                a("v_mul_u32_u24 v42, 40, v41")
                a("v_sub_u32 v40, v40, v42")
                a("v_mul_u32_u24 v42, 20, v41")
                a("v_sub_u32 v42, v39, v42")
                a("v_cmp_gt_u32 s[%d:%d], 20, v42" % (62 + 2 * jj, 63 + 2 * jj) if False else "v_cmp_gt_u32 s[50:51], 20, v42")
                a("v_cmp_eq_u32 s[48:49], 40, v39")
                a("s_nop 1")
                a("v_cndmask_b32 v42, v42, 20, s[48:49]")
                a("s_or_b64 s[50:51], s[50:51], s[48:49]")
                a("v_lshrrev_b32 v43, 2, v42")
                a("v_lshlrev_b32 v43, 3, v43")
                a("v_lshl_add_u32 v43, v41, 2, v43")
                a("v_and_b32 v44, 3, v42")
                a("v_add_u32 v43, v43, v44")
                a("v_mul_u32_u24 v43, 160, v43")
                a("v_lshrrev_b32 v44, 3, v40")
                a("v_lshlrev_b32 v44, 4, v44")
                a("v_lshl_add_u32 v44, v41, 3, v44")
                a("v_and_b32 v45, 7, v40")
                a("v_add_u32 v44, v44, v45")
                a("v_lshl_add_u32 v43, v44, 1, v43")
                a("v_add_u32 v43, %d, v43" % IMG)
                a("s_waitcnt vmcnt(%d)" % (3 - jj))
                a("v_cvt_pk_bf16_f32 v44, v%d, v%d" % (B, B + 1))
                a("v_cvt_pk_bf16_f32 v45, v%d, v%d" % (B + 2, B + 3))
                a("s_and_saveexec_b64 s[48:49], s[50:51]")
                a("ds_write_b64 v43, v[44:45]")
                a("s_mov_b64 exec, s[48:49]")
            lsync(2)
            a("v_mul_u32_u24 v9, 160, v4")
            a("v_lshl_add_u32 v9, v3, 4, v9")
            a("v_add_u32 v9, %d, v9" % IMG)
            for u in range(2):
                for s_ in range(5):
                    a("ds_read_b128 %s, v9 offset:%d" % (vr(160 + 4 * (u * 5 + s_), 4), u * 32 * 160 + s_ * 32))
            for i in range(32):
                a("v_mov_b32 v%d, 0" % (128 + i))
            a("s_lshl_b32 s43, s41, 1")
            a("s_lshr_b32 s47, s60, 1")
            a("s_add_u32 s43, s43, s47")
            a("s_mul_i32 s43, s43, %d" % (68 * 4096))
            a("s_and_b32 s47, s60, 1")
            a("s_lshl_b32 s47, s47, 11")
            a("s_add_u32 s47, s47, s43")
            a("s_mul_i32 s43, s42, 40")
            a("v_mul_u32_u24 v9, 20, v3")
            a("v_add_u32 v9, s43, v9")
            a("v_lshlrev_b32 v10, 6, v4")
            for m in range(5):
                a("v_add_u32 v11, %d, v9" % (4 * m))
                a("v_lshrrev_b32 v12, 5, v11")
                a("v_lshlrev_b32 v12, 12, v12")
                a("v_and_b32 v11, 31, v11")
                a("v_lshl_add_u32 v12, v11, 1, v12")
                a("v_add_u32 v%d, v12, v10" % (40 + m))
            a("s_waitcnt lgkmcnt(0)")
            for s_ in range(5):
                for u in range(2):
                    a("v_mfma_f32_32x32x16_bf16 %s, %s, %s, %s" % (vr(128 + 16 * u, 16), vr(160 + 4 * (u * 5 + s_), 4), vr(84 + 4 * s_, 4), vr(128 + 16 * u, 16)))
            a.nop(12)
            for i in range(0, 20, 2):
                a("v_cvt_pk_bf16_f32 v%d, v%d, v%d" % (48 + i // 2, 128 + i, 129 + i))
            a("v_cvt_pk_bf16_f32 v58, v148, v148")
            a("v_and_b32 v58, 0xffff0000, v58")
            a("v_add_f32 v58, 0x358637bd, v58")
            a("v_cvt_pk_bf16_f32 v58, v58, v58")
            a("v_and_b32 v58, 0xffff0000, v58")
            a("v_rcp_f32 v58, v58")
            for i in range(0, 20, 2):
                a("v_lshlrev_b32 v%d, 16, v%d" % (128 + i, 48 + i // 2))
                a("v_and_b32 v%d, 0xffff0000, v%d" % (129 + i, 48 + i // 2))
            a("v_mov_b32 v59, v58")
            for i in range(0, 20, 2):
                a("v_pk_mul_f32 %s, %s, v[58:59]" % (vr(128 + i, 2), vr(128 + i, 2)))
            for i in range(0, 20, 2):
                a("v_cvt_pk_bf16_f32 v%d, v%d, v%d" % (48 + i // 2, 128 + i, 129 + i))
            for m in range(5):
                a("buffer_store_dwordx2 %s, v%d, s[32:35], s47 offen" % (vr(48 + 2 * m, 2), 40 + m))
            if STAMP:
                a("s_waitcnt vmcnt(0)")
                stamp()
                a("s_memrealtime s[100:101]")
                a("s_waitcnt lgkmcnt(0)")
                a("s_cmp_lg_u32 s40, 0")
                a("s_cbranch_scc1 L_k1_end")
                a("v_mov_b32 v2, s98")
                a("v_mov_b32 v3, s100")
                a("s_lshl_b32 s43, s2, 3")
                a("s_add_u32 s43, s43, %d" % (30 * 1024 * 1024))
                a("v_mov_b32 v5, 0")
                a("buffer_store_dwordx2 v[2:3], v5, s[32:35], s43 offen")
                a("s_cmp_lg_u32 s2, 0")
                a("s_cbranch_scc1 L_k1_end")
                srd(a, 16, 58, 256)
                a("v_mov_b32 v2, 0")
                for i in range(nst[0]):
                    a("s_sub_u32 s43, s%d, s78" % (78 + 2 * i))
                    a("v_mov_b32 v3, s43")
                    a("buffer_store_dword v3, v2, s[16:19], 0 offen offset:%d" % (4 * i))
            a("s_endpgm")
        else:
            a("s_waitcnt lgkmcnt(0)")
            a("s_barrier")
            a("ds_read_b32 v12, v11")
            a("ds_read_b32 v14, v11 offset:4")
            def cq(t, q):
                i = 16 * t + 4 * q
                return 160 + i if i < 64 else 16 + (i - 64)
            for t in range(6):
                for q in range(4):
                    a("ds_read_b128 %s, v10 offset:%d" % (vr(cq(t, q), 4), t * 128 + q * 32))
            a("s_lshl_b32 s43, s41, 1")
            a("s_lshr_b32 s47, s60, 1")
            a("s_add_u32 s43, s43, s47")
            a("s_mul_i32 s43, s43, 68")
            a("s_mul_i32 s47, s42, 3")
            a("s_add_u32 s43, s43, s47")
            a("s_add_u32 s43, s43, 20")
            a("s_lshl_b32 s43, s43, 12")
            a("s_and_b32 s47, s60, 1")
            a("s_lshl_b32 s47, s47, 11")
            a("s_add_u32 s47, s47, s43")
            a("v_lshlrev_b32 v5, 6, v4")
            a("v_lshl_add_u32 v5, v3, 3, v5")
            a("v_mov_b32 v48, 0xc0135761"); a("v_mov_b32 v49, 0xc0135761")
            a("v_mov_b32 v50, 0x3d372713"); a("v_mov_b32 v51, 0x3d372713")
            a("v_mov_b32 v52, 1.0"); a("v_mov_b32 v53, 1.0")
            a("s_waitcnt lgkmcnt(0)")
            a("v_mov_b32 v13, v12")
            a("v_mov_b32 v15, v14")
            for t in range(6):
                lnfix(ACC + 16 * t, cq(t, 0), 16)
            for i in range(0, 96, 2):
                a("v_cvt_pk_bf16_f32 v%d, v%d, v%d" % (160 + i // 2, ACC + i, ACC + i + 1))
            for i in range(0, 96, 2):
                a("v_lshlrev_b32 v%d, 16, v%d" % (ACC + i, 160 + i // 2))
                a("v_and_b32 v%d, 0xffff0000, v%d" % (ACC + i + 1, 160 + i // 2))
            for i in range(3):
                G = ACC + 32 * i; T = 160 + 16 * i
                for e in range(0, 16, 2):
                    a("v_pk_mul_f32 %s, %s, %s" % (vr(T + e, 2), vr(G + e, 2), vr(G + e, 2)))
                for e in range(0, 16, 2):
                    a("v_pk_fma_f32 %s, %s, v[50:51], v[52:53]" % (vr(T + e, 2), vr(T + e, 2)))
                for e in range(0, 16, 2):
                    a("v_pk_mul_f32 %s, %s, %s" % (vr(T + e, 2), vr(T + e, 2), vr(G + e, 2)))
                for e in range(0, 16, 2):
                    a("v_pk_mul_f32 %s, %s, v[48:49]" % (vr(T + e, 2), vr(T + e, 2)))
            for i in range(48):
                a("v_exp_f32 v%d, v%d" % (160 + i, 160 + i))
            a("s_nop 0")
            for e in range(0, 48, 2):
                a("v_pk_add_f32 %s, %s, v[52:53]" % (vr(160 + e, 2), vr(160 + e, 2)))
            for i in range(48):
                a("v_rcp_f32 v%d, v%d" % (160 + i, 160 + i))
            a("s_nop 0")
            for i in range(3):
                G = ACC + 32 * i; T = 160 + 16 * i
                for e in range(0, 16, 2):
                    a("v_pk_mul_f32 %s, %s, %s" % (vr(T + e, 2), vr(T + e, 2), vr(G + e, 2)))
            for e in range(0, 48, 2):
                a("v_cvt_pk_bf16_f32 v%d, v%d, v%d" % (16 + e // 2, 160 + e, 161 + e))
            for e in range(0, 48, 2):
                a("v_lshlrev_b32 v%d, 16, v%d" % (160 + e, 16 + e // 2))
                a("v_and_b32 v%d, 0xffff0000, v%d" % (161 + e, 16 + e // 2))
            for i in range(3):
                U = ACC + 32 * i + 16; T = 160 + 16 * i
                for e in range(0, 16, 2):
                    a("v_pk_mul_f32 %s, %s, %s" % (vr(T + e, 2), vr(T + e, 2), vr(U + e, 2)))
            for e in range(0, 48, 2):
                a("v_cvt_pk_bf16_f32 v%d, v%d, v%d" % (16 + e // 2, 160 + e, 161 + e))
            for i in range(3):
                for q in range(4):
                    a("buffer_store_dwordx2 %s, v5, s[32:35], s47 offen offset:%d" % (vr(16 + 8 * i + 2 * q, 2), q * 16))
                a("s_add_u32 s47, s47, 4096")
    a.label("L_k1_end")
    a("s_endpgm")
    return dict(name=name, vgpr=256, sgpr=102, grid=256, block=512, lds=LDS, accum=256)
```

```python
AH_PITCH = 2176 * 2
AH_BYTES = 2048 * AH_PITCH
AH_OFF = 0
PART_OFF = 9 * 1024 * 1024
PART_BYTES = 16 * 16 * 15 * 1024
PHIQ_OFF = 14 * 1024 * 1024
PHIQ_BYTES = 256 * 20480
WT_OFF = 20 * 1024 * 1024
CSP_OFF = 24 * 1024 * 1024
KVA_OFF = 26 * 1024 * 1024
FLG_OFF = 28 * 1024 * 1024
SSP_OFF = 25 * 1024 * 1024
NON_OFF = 29 * 1024 * 1024
```

```python
from asmlib import *
from layout import *
import os
EXP = os.environ.get('K1EXP', '')

class Vm:
    def __init__(self, a):
        self.a = a; self.q = []
    def issue(self, tag):
        self.q.append(tag)
    def wait(self, tags, extra=""):
        if isinstance(tags, str): tags = [tags]
        idxs = [i for i, t in enumerate(self.q) if t in tags]
        if not idxs:
            if extra: self.a("s_waitcnt" + extra)
            return
        idx = max(idxs)
        n = len(self.q) - 1 - idx
        self.a("s_waitcnt vmcnt(%d)%s" % (min(n, 63), extra))
        self.q = self.q[idx + 1:] if n <= 63 else self.q[len(self.q) - 63:]

LOG2E = 0x3fb8aa3b
STAMP = 'stamp' in EXP
def gen_k1(a):
    nst = [0]
    def stamp():
        if not STAMP: return
        a("s_memtime s[%d:%d]" % (78 + 2 * nst[0], 79 + 2 * nst[0]))
        nst[0] += 1
    name = "k1_kernel"
    kernel_begin(a, name)
    WSL = 20480; XS = 4 * WSL
    IMG = XS + 3 * 16384
    CS = IMG + 15360
    STT = CS + 1536
    CNT = STT + 1024
    LDS = CNT + 64
    TI = 0
    ACC = 64
    NEGM, RSTD = 12, 14
    TRB0, TRB1, VWA, VWF, VX0, VX1, XR0, ST2, CSV, TMP = 236, 237, 238, 239, 240, 241, 242, 246, 248, 252
    a("s_cmp_ge_u32 s2, 256")
    a("s_cbranch_scc1 L_k1_end")
    stamp()
    if STAMP: a("s_memrealtime s[98:99]")
    a("s_load_dwordx4 s[4:7], s[0:1], 0")
    a("s_load_dwordx2 s[10:11], s[0:1], 40")
    a("s_load_dwordx2 s[12:13], s[0:1], 48")
    a("s_load_dwordx2 s[8:9], s[0:1], 16")
    a("s_load_dwordx2 s[14:15], s[0:1], 80")
    a("s_load_dwordx2 s[58:59], s[0:1], 72")
    a("v_lshrrev_b32 v2, 6, v0")
    a("v_and_b32 v1, 63, v0")
    a("s_nop 0")
    a("v_readfirstlane_b32 s40, v2")
    a("s_and_b32 s42, s2, 7")
    a("s_lshr_b32 s43, s2, 7")
    a("s_lshl_b32 s43, s43, 3")
    a("s_or_b32 s42, s42, s43")
    a("s_bfe_u32 s41, s2, 0x40003")
    a("s_and_b32 s60, s40, 3")
    a("s_lshr_b32 s61, s40, 2")
    a("v_lshrrev_b32 v3, 5, v1")
    a("v_and_b32 v4, 31, v1")
    a("v_lshrrev_b32 v5, 2, v1")
    a("v_and_b32 v6, 3, v1")
    a("s_lshl_b32 s43, s60, 2")
    a("v_add_u32 v7, s43, v6")
    a("v_min_u32 v7, 14, v7")
    a("v_mul_u32_u24 v8, 13, v7")
    a("v_lshrrev_b32 v8, 6, v8")
    a("v_mul_u32_u24 v9, 5, v8")
    a("v_sub_u32 v9, v7, v9")
    a("v_lshrrev_b32 v10, 1, v8")
    a("v_sub_u32 v10, 1, v10")
    a("v_xor_b32 v8, v8, v10")
    a("v_mul_u32_u24 v8, 1280, v8")
    a("v_lshl_add_u32 v8, v9, 4, v8")
    a("v_mul_u32_u24 v9, 3840, v5")
    a("s_mul_i32 s43, s42, 80")
    a("v_add3_u32 v%d, v8, v9, s43" % VWA)
    a("v_mul_u32_u24 v9, 3072, v5")
    a("v_lshl_add_u32 v9, v6, 4, v9")
    a("s_mul_i32 s43, s42, 192")
    a("v_add_u32 v%d, s43, v9" % VWF)
    a("v_lshrrev_b32 v5, 3, v1")
    a("v_and_b32 v6, 7, v1")
    a("v_lshrrev_b32 v7, 1, v5")
    a("v_xor_b32 v8, v6, v7")
    a("v_mul_u32_u24 v9, 1280, v5")
    a("v_lshl_add_u32 v%d, v8, 4, v9" % VX0)
    a("v_xor_b32 v8, 4, v8")
    a("v_lshl_add_u32 v%d, v8, 4, v9" % VX1)
    a("v_add_u32 v%d, %d, v%d" % (VX1, 8 * 1280, VX1))
    a("s_lshl_b32 s45, s41, 7")
    a("s_lshl_b32 s43, s40, 4")
    a("s_add_u32 s45, s45, s43")
    a("s_mul_i32 s45, s45, 1280")
    a("s_lshl_b32 s57, s40, 11")
    a("s_add_u32 s57, s57, %d" % XS)
    a("s_lshl_b32 s46, s60, 11")
    a("s_cmp_eq_u32 s60, 3")
    a("s_cselect_b32 s48, 0x77777777, -1")
    a("s_mov_b32 s49, s48")
    a("s_lshl_b32 s43, s60, 1")
    a("s_add_u32 s43, s43, 4")
    a("s_cmp_eq_u32 s61, 0")
    a("s_cselect_b32 s62, s60, s43")
    a("s_cmp_ge_u32 s41, 10")
    a("s_cselect_b32 s43, 10, 0")
    a("s_sub_u32 s43, s41, s43")
    if 'norot' in EXP: a("s_mov_b32 s43, 0")
    a("s_mul_i32 s66, s43, %d" % (64 * 3840))
    a("s_mul_i32 s67, s43, %d" % (64 * 3072))
    a("s_lshl_b32 s65, s43, 7")
    a("s_waitcnt lgkmcnt(0)")
    srd(a, 16, 4, 2048 * 1280)
    srd(a, 20, 6, 640 * 3840)
    for n in range(2):
        S = 24 + 4 * n
        a("s_add_u32 s43, s62, %d" % n)
        a("s_lshr_b32 s44, s43, 1")
        a("s_and_b32 s47, s43, 1")
        a("s_bitcmp1_b32 s44, 0")
        a("s_cselect_b32 s%d, s12, s10" % S)
        a("s_cselect_b32 s%d, s13, s11" % (S + 1))
        a("s_and_b32 s%d, s%d, 0xffff" % (S + 1, S + 1))
        a("s_mov_b32 s%d, %d" % (S + 2, 640 * 3072))
        a("s_mov_b32 s%d, 0x00020000" % (S + 3))
        a("s_mul_i32 s%d, s47, %d" % (72 + n, 16 * 3072))
        a("s_lshr_b32 s43, s44, 1")
        a("s_lshl_b32 s43, s43, 6")
        a("s_add_u32 s%d, s%d, s43" % (72 + n, 72 + n))
        a("s_lshl_b32 s%d, s44, 11" % (75 + n))
        a("s_lshl_b32 s43, s47, 10")
        a("s_add_u32 s%d, s%d, s43" % (75 + n, 75 + n))
        a("s_add_u32 s%d, s%d, 8192" % (75 + n, 75 + n))

    def dma_w(role, st):
        out = []; tag = "W%d" % st; slot = st % 4
        if role == 0:
            out.append("s_mov_b32 s44, s66")
            out.append("s_mov_b64 exec, s[48:49]")
            for j in range(2):
                out.append("s_add_u32 m0, s46, %d" % (slot * WSL + j * 1024))
                out.append("s_nop 0" if j == 0 else "s_add_u32 s44, s44, %d" % (16 * 3840))
                out.append(("buffer_load_dwordx4 v%d, s[20:23], s44 offen lds" % VWA, tag))
            out.append("s_mov_b64 exec, -1")
            out.append("s_add_u32 s66, s66, %d" % (32 * 3840))
            out.append("s_cmp_ge_u32 s66, %d" % (640 * 3840))
            out.append("s_cselect_b32 s66, 0, s66")
        for n in range(1 if role == 0 else 2):
            out.append("s_add_u32 m0, s%d, %d" % (75 + n, slot * WSL))
            out.append("s_add_u32 s44, s%d, s67" % (72 + n))
            out.append(("buffer_load_dwordx4 v%d, s[%d:%d], s44 offen lds" % (VWF, 24 + 4 * n, 27 + 4 * n), tag))
        out.append("s_add_u32 s67, s67, %d" % (32 * 3072))
        out.append("s_cmp_ge_u32 s67, %d" % (640 * 3072))
        out.append("s_cselect_b32 s67, 0, s67")
        return out
    def dma_x(xb):
        out = []; tag = "X%d" % xb; slot = xb % 3
        out.append("s_add_u32 s44, s45, s65")
        for g in range(2):
            out.append("s_add_u32 m0, s57, %d" % (slot * 16384 + g * 1024))
            out.append("s_nop 0")
            out.append(("buffer_load_dwordx4 v%d, s[16:19], s44 offen lds" % (VX0 + g), tag))
        out.append("s_add_u32 s65, s65, 128")
        out.append("s_cmp_ge_u32 s65, 1280")
        out.append("s_cselect_b32 s65, 0, s65")
        return out

    a("s_cmp_eq_u32 s61, 1")
    a("s_cbranch_scc1 L_k1_roleB")
    for role in range(2):
        vm = Vm(a)
        def emit(l):
            if isinstance(l, tuple):
                a(l[0]); vm.issue(l[1])
            elif l == "WAIT_CSP": vm.wait("CSP")
            elif l == "WAIT_POLL": vm.wait("POLL")
            else:
                a(l)
        if role == 1:
            a.label("L_k1_roleB")
        nt = 4 if role == 0 else 6
        t0 = 0 if role == 0 else 4
        WF = [16, 40]
        XF = [32, 56] if role == 0 else [160, 164]
        for l in dma_w(role, 0): emit(l)
        for l in dma_x(0): emit(l)
        for l in dma_w(role, 1): emit(l)
        srd(a, 32, 14, 32 * 1024 * 1024)
        srd(a, 36, 8, 32 * 800)
        a("v_lshlrev_b32 v5, 3, v3")
        a("v_bfe_u32 v6, v1, 2, 2")
        a("v_add_u32 v5, v5, v6")
        a("v_lshlrev_b32 v5, 6, v5")
        a("v_bfe_u32 v6, v1, 4, 1")
        a("v_lshl_add_u32 v5, v6, 5, v5")
        a("v_and_b32 v6, 3, v1")
        a("v_lshl_add_u32 v%d, v6, 3, v5" % TRB0)
        a("v_add_u32 v%d, %d, v%d" % (TRB1, 2 * WSL, TRB0))
        a("s_lshl_b32 s43, s60, 5")
        a("v_add_u32 v5, s43, v4")
        a("v_lshlrev_b32 v5, 7, v5")
        a("v_add_u32 v5, %d, v5" % XS)
        a("v_bfe_u32 v6, v4, 1, 3")
        for ks in range(4):
            a("v_add_u32 v7, %d, v3" % (2 * ks))
            a("v_xor_b32 v7, v7, v6")
            a("v_lshl_add_u32 v%d, v7, 4, v5" % (XR0 + ks))
        a("s_lshl_b32 s63, s60, 2")
        a("s_add_u32 s64, s60, 4")
        a("s_min_u32 s64, s64, 5")
        a("s_lshl_b32 s64, s64, 2")
        if role == 0:
            a("s_lshl_b32 s43, s42, 12")
            a("s_lshl_b32 s44, s41, 8")
            a("s_add_u32 s43, s43, s44")
            a("s_add_u32 s43, s43, %d" % FLG_OFF)
            a("v_mov_b32 v5, 0")
            a("s_mov_b64 exec, 1")
            a("buffer_store_dword v5, v5, s[32:35], s43 offen sc1")
            vm.issue("FLG")
            a("s_mov_b64 exec, -1")
            a("s_mul_i32 s43, s42, 1600")
            PH = 64
            for it in range(7):
                a("v_add_u32 v5, %d, v0" % (256 * it))
                a("v_min_u32 v5, 1599, v5")
                a("v_mul_u32_u24 v6, 1311, v5")
                a("v_lshrrev_b32 v%d, 19, v6" % (72 + it))
                a("v_mul_u32_u24 v7, 400, v%d" % (72 + it))
                a("v_sub_u32 v%d, v5, v7" % (80 + it))
                a("v_and_b32 v8, 1, v%d" % (72 + it))
                a("v_mul_u32_u24 v8, 400, v8")
                a("v_add_u32 v8, v8, v%d" % (80 + it))
                a("v_lshlrev_b32 v8, 1, v8")
                a("buffer_load_ushort v%d, v8, s[36:39], s43 offen" % (PH + it))
                vm.issue("PH")
            for it in range(7):
                sl = 72 + it; rem = 80 + it
                a("v_mul_u32_u24 v8, 3277, v%d" % rem)
                a("v_lshrrev_b32 v8, 16, v8")
                a("v_mul_u32_u24 v9, 20, v8")
                a("v_sub_u32 v9, v%d, v9" % rem)
                a("v_and_b32 v10, 1, v%d" % sl)
                a("v_mul_u32_u24 v10, 5, v10")
                a("v_lshrrev_b32 v11, 2, v9")
                a("v_add_u32 v10, v10, v11")
                a("v_lshlrev_b32 v10, 3, v10")
                a("v_lshrrev_b32 v11, 1, v%d" % sl)
                a("v_lshl_add_u32 v10, v11, 2, v10")
                a("v_and_b32 v11, 3, v9")
                a("v_add_u32 v10, v10, v11")
                a("v_mul_u32_u24 v10, 160, v10")
                a("v_mul_u32_u24 v11, 20, v%d" % sl)
                a("v_add_u32 v11, v11, v8")
                a("v_and_b32 v13, 0x73, v11")
                a("v_bfe_u32 v14, v11, 2, 1")
                a("v_lshl_add_u32 v13, v14, 3, v13")
                a("v_bfe_u32 v14, v11, 3, 1")
                a("v_lshl_add_u32 v13, v14, 2, v13")
                a("v_lshl_add_u32 v10, v13, 1, v10")
                a("v_add_u32 v%d, %d, v10" % (88 + it, IMG))
        else:
            a("v_mov_b32 v8, 0"); a("v_mov_b32 v9, 0"); a("v_mov_b32 v10, 0"); a("v_mov_b32 v11, 0")
            a("v_subrev_u32 v7, 256, v0")
            a("v_lshlrev_b32 v5, 4, v7")
            a("v_add_u32 v5, %d, v5" % IMG)
            for i in range(3):
                a("ds_write_b128 v5, v[8:11] offset:%d" % (i * 4096))
            a("v_cmp_gt_u32 vcc, 192, v7")
            a("s_and_saveexec_b64 s[50:51], vcc")
            a("ds_write_b128 v5, v[8:11] offset:%d" % (3 * 4096))
            a("s_mov_b64 exec, s[50:51]")
            a("v_mov_b32 v5, %d" % CNT)
            a("ds_write_b64 v5, v[8:9]")
            a("ds_write_b64 v5, v[8:9] offset:8")

            a("v_lshrrev_b32 v5, 5, v7")
            a("v_mul_u32_u24 v5, %d, v5" % WSL)
            a("v_lshl_add_u32 v5, v4, 6, v5")
            a("v_add_u32 v5, %d, v5" % (3 * 2048 + 48))
            a("v_mov_b32 v8, 0x3f80")
            a("v_cmp_gt_u32 vcc, 128, v7")
            a("s_and_saveexec_b64 s[50:51], vcc")
            a("ds_write_b128 v5, v[8:11]")
            a("s_mov_b64 exec, s[50:51]")
        for i in range(6):
            a("v_mov_b32 v%d, 0" % (ST2 + i))

        srd(a, 52, 58, 256) if False else None
        a("s_mov_b32 s52, s58")
        a("s_and_b32 s53, s59, 0xffff")
        a("s_mov_b32 s54, 256")
        a("s_mov_b32 s55, 0x00020000")
        a("s_lshl_b32 s56, s42, 2")
        a("s_add_u32 s56, s56, 128")
        a("s_lshl_b32 s43, s42, 4")
        a("s_mul_i32 s50, s43, 1536")
        a("s_add_u32 s50, s50, %d" % CSP_OFF)
        a("s_mul_i32 s51, s41, 1536")
        a("s_add_u32 s51, s51, s50")
        a("s_lshl_b32 s43, s60, 7")
        a("s_add_u32 s51, s51, s43")
        if role: a("s_add_u32 s51, s51, 512")
        a("v_lshlrev_b32 v235, 6, v2")
        a("v_add_u32 v235, v235, v1")
        a("v_min_u32 v235, 319, v235")
        a("v_lshlrev_b32 v235, 2, v235")
        def publish():
            out = []
            for k in range(1 if role == 0 else 2):
                out.append("v_add_f32 v%d, v%d, v%d" % (CSV + 2 * k, CSV + 2 * k, CSV + 2 * k + 1))
                out.append("v_mov_b32 v%d, v%d" % (CSV + 2 * k + 1, CSV + 2 * k))
                out.append("s_nop 1")
                out.append("v_permlane32_swap_b32 v%d, v%d" % (CSV + 2 * k + 1, CSV + 2 * k))
                out.append("s_nop 1")
                out.append("v_add_f32 v%d, v%d, v%d" % (CSV + 2 * k, CSV + 2 * k, CSV + 2 * k + 1))
                out.append("v_lshlrev_b32 v%d, 2, v4" % TMP)
                out.append(("buffer_store_dword v%d, v%d, s[32:35], s51 offen offset:%d sc1" % (CSV + 2 * k, TMP, 512 * k), "CSP"))
            return out
        def signal():
            if role: return []
            out = []
            out.append("s_cmp_lt_u32 s41, 10")
            out.append("s_cselect_b32 s43, 1, 0")
            out.append("s_cmp_eq_u32 s40, 0")
            out.append("s_cselect_b32 s43, s43, 0")
            out.append("v_mov_b32 v%d, 1" % TMP)
            out.append("v_mov_b32 v%d, 0" % (TMP + 1))
            out.append("s_mov_b32 exec_lo, s43")
            out.append("s_mov_b32 exec_hi, 0")
            out.append(("buffer_atomic_add v%d, v%d, s[52:55], s56 offen sc1" % (TMP, TMP + 1), "SIG"))
            out.append("s_mov_b64 exec, -1")
            return out
        def poll():
            return ["v_mov_b32 v%d, 0" % (TMP + 1), ("buffer_load_dword v234, v%d, s[52:55], s56 offen sc1" % (TMP + 1), "POLL")]
        def gather(inloop):
            out = []
            if inloop:
                out.append("WAIT_POLL")
                out.append("v_readfirstlane_b32 s47, v234")
            out.append("s_mov_b32 s43, s50")
            for i in range(10):
                out.append(("buffer_load_dword v%d, v235, s[32:35], s43 offen sc1" % (224 + i), "GAT"))
                if i < 9: out.append("s_add_u32 s43, s43, 1536")
            return out
        def frag_reads(st, kk, par):
            fs = WF[par]; slot = st % 4
            base = TRB0 if slot < 2 else TRB1
            out = ["ds_read_b128 %s, v%d offset:%d" % (vr(XF[par], 4), XR0 + 2 * (st & 1) + kk, ((st >> 1) % 3) * 16384)]
            for t in range(nt):
                for rd in range(2):
                    out.append("ds_read_b64_tr_b16 %s, v%d offset:%d" % (vr(fs + 4 * t + 2 * rd, 2), base, (slot & 1) * WSL + (t0 + t) * 2048 + kk * 1024 + rd * 256))
            return out
        vm.wait(["W0", "X0"], " lgkmcnt(0)")
        a("s_barrier")
        if role == 0: stamp()
        for l in frag_reads(0, 0, 0): a(l)
        if role == 0:
            vm.wait("PH")
            for it in range(7):
                a("ds_write_b16 v%d, v%d" % (88 + it, 64 + it))
            a("s_nop 1")
        for i in range(16 * nt):
            a("v_mov_b32 v%d, 0" % (ACC + i))
        for st in range(20):
            for kk in range(2):
                g = st * 2 + kk
                par = g & 1
                cur = WF[par]
                a("s_waitcnt lgkmcnt(0)")
                bar = False; rd = []; dm = []
                if kk == 0:
                    rd = frag_reads(st, 1, par ^ 1)
                    if st == 0: dm = dma_x(1) + dma_w(role, 2)
                    if st == 1: dm = dma_x(2)
                elif st < 19:
                    bar = True
                    rd = frag_reads(st + 1, 0, par ^ 1)
                    if st == 0: dm = dma_w(role, 3)
                    if st + 4 < 20: dm = dm + dma_w(role, st + 4)
                    if (st & 1) and (st >> 1) + 3 < 10: dm = dm + dma_x((st >> 1) + 3)
                groups = []
                for k in range((1 if role == 0 else 2) if g < 4 else 0):
                    for dd in range(2):
                        gq = ["s_set_gpr_idx_on s%d, 0x2" % (63 + k)]
                        for d in (2 * dd, 2 * dd + 1):
                            gq.append("v_lshlrev_b32 v%d, 16, v%d" % (TMP + 2 * (d & 1), cur + d))
                            gq.append("v_and_b32 v%d, 0xffff0000, v%d" % (TMP + 2 * (d & 1) + 1, cur + d))
                        gq.append("s_set_gpr_idx_off")
                        for d in range(2):
                            gq.append("v_pk_add_f32 %s, %s, %s" % (vr(CSV + 2 * k, 2), vr(CSV + 2 * k, 2), vr(TMP + 2 * d, 2)))
                        groups.append(gq)
                if role == 0:
                    xt = XF[par]
                    for dd in range(2):
                        gq = []
                        for d in (2 * dd, 2 * dd + 1):
                            gq.append("v_lshlrev_b32 v%d, 16, v%d" % (TMP + 2 * (d & 1), xt + d))
                            gq.append("v_and_b32 v%d, 0xffff0000, v%d" % (TMP + 2 * (d & 1) + 1, xt + d))
                        for d in range(2):
                            gq.append("v_pk_fma_f32 %s, %s, %s, %s" % (vr(ST2, 2), vr(TMP + 2 * d, 2), vr(TMP + 2 * d, 2), vr(ST2, 2)))
                        groups.append(gq)
                if 'nodot' in EXP: groups = []
                if 'nodma' in EXP: dm = []
                if 'notr' in EXP: rd = rd[:1]
                slots = [[] for _ in range(nt)]
                first = 1 if bar else 0
                nrs = 3 if role else 2
                per = (len(rd) + nrs - 1) // nrs if rd else 0
                for i, l in enumerate(rd):
                    slots[first + i // per].append(l)
                for i, gq in enumerate(groups):
                    slots[(nt - 4 + i) if role else (i if g < 4 else 2 + i)].extend(gq)
                if 'noshare' in EXP: pass
                elif g == 4: slots[0].extend(publish())
                elif g == 9: slots[nt - 1].extend(signal())
                elif g == 29: slots[nt - 1].extend(poll())
                elif g == 33: slots[nt - 1].extend(gather(True))
                if dm:
                    slots[nt - 1].extend(dm)
                for t in range(nt):
                    d = ACC + 16 * t
                    a("v_mfma_f32_32x32x16_bf16 %s, %s, %s, %s" % (vr(d, 16), vr(cur + 4 * t, 4), vr(XF[par], 4), vr(d, 16)))
                    if t == 0 and bar:
                        need = ["W%d" % (st + 1)] + (["X%d" % ((st + 1) >> 1)] if (st & 1) else [])
                        if g == 9: need.append("CSP")
                        vm.wait(need)
                        a("s_barrier")
                    for l in slots[t]:
                        emit(l)
        if role == 0: stamp()
        lab = a.newlabel("gok"); lp = a.newlabel("gpoll")
        if 'noshare' in EXP: a("s_mov_b32 s47, 10")
        a("s_cmp_ge_u32 s47, 10")
        a("s_cbranch_scc1 %s" % lab)
        a.label(lp)
        a("v_mov_b32 v%d, 0" % (TMP + 1))
        a("buffer_load_dword v234, v%d, s[52:55], s56 offen sc1" % (TMP + 1))
        a("s_waitcnt vmcnt(0)")
        a("v_readfirstlane_b32 s47, v234")
        a("s_nop 3")
        a("s_cmp_ge_u32 s47, 10")
        a("s_cbranch_scc0 %s" % lp)
        for l in gather(False):
            a(l[0] if isinstance(l, tuple) else l)
        a.label(lab)
        a("v_add_f32 v%d, v%d, v%d" % (ST2, ST2, ST2 + 1))
        a("s_waitcnt vmcnt(0)")
        vm.q = []
        for i in range(0, 10, 2):
            a("v_add_f32 v%d, v%d, v%d" % (224 + i, 224 + i, 225 + i))
        a("v_add_f32 v224, v224, v226")
        a("v_add_f32 v228, v228, v230")
        a("v_add_f32 v224, v224, v232")
        a("v_add_f32 v224, v224, v228")
        a("v_add_u32 v9, %d, v235" % CS)
        a("ds_write_b32 v9, v224")
        a("s_lshl_b32 s43, s60, 8")
        a("s_add_u32 s43, s43, %d" % STT)
        a("v_lshlrev_b32 v11, 3, v4")
        a("v_add_u32 v11, s43, v11")
        a("v_lshlrev_b32 v10, 4, v3")
        a("v_add_u32 v10, %d, v10" % (CS + t0 * 128))
        def lnfix(accreg, csreg, n):
            for i in range(0, n, 2):
                a("v_pk_fma_f32 %s, %s, %s, %s" % (vr(accreg + i, 2), vr(NEGM, 2), vr(csreg + i, 2), vr(accreg + i, 2)))
            for i in range(0, n, 2):
                a("v_pk_mul_f32 %s, %s, %s" % (vr(accreg + i, 2), vr(RSTD, 2), vr(accreg + i, 2)))
        def kv_gather():
            a("s_barrier")
            if role == 0: stamp()
            a("s_mul_i32 s46, s42, %d" % (16 * 15360))
            a("s_add_u32 s46, s46, %d" % PART_OFF)
            a("v_lshlrev_b32 v8, 4, v1")
            for jj in range(2):
                a("s_add_u32 s54, s40, %d" % (8 * jj))
                a("s_min_u32 s54, s54, 14")
                a("s_lshl_b32 s55, s54, 10")
                a("s_add_u32 s55, s55, s46")
                for rr in range(16):
                    a("buffer_load_dwordx4 %s, v8, s[32:35], s55 offen sc1" % vr(104 + 64 * jj + 4 * rr, 4))
                    if rr < 15: a("s_add_u32 s55, s55, 15360")
            for jj in range(2):
                B = 104 + 64 * jj
                a("s_add_u32 s54, s40, %d" % (8 * jj))
                a("s_min_u32 s54, s54, 14")
                a("s_mul_i32 s55, s54, 11")
                a("s_lshr_b32 s55, s55, 5")
                a("s_mul_i32 s56, s55, 3")
                a("s_sub_u32 s56, s54, s56")
                a("s_lshl_b32 s55, s55, 4")
                a("s_lshl_b32 s56, s56, 4")
                a("v_and_b32 v39, 15, v1")
                a("v_add_u32 v39, s56, v39")
                a("v_lshrrev_b32 v40, 4, v1")
                a("v_lshlrev_b32 v40, 2, v40")
                a("v_add_u32 v40, s55, v40")
                a("v_cmp_le_u32 vcc, 40, v40")
                a("s_nop 1")
                a("v_cndmask_b32 v41, 0, 1, vcc")
                a("v_mul_u32_u24 v42, 40, v41")
                a("v_sub_u32 v40, v40, v42")
                a("v_mul_u32_u24 v42, 20, v41")
                a("v_sub_u32 v42, v39, v42")
                a("v_cmp_gt_u32 s[50:51], 20, v42")
                a("v_cmp_eq_u32 s[48:49], 40, v39")
                a("s_nop 1")
                a("v_cndmask_b32 v42, v42, 20, s[48:49]")
                a("s_or_b64 s[50:51], s[50:51], s[48:49]")
                a("v_lshrrev_b32 v43, 2, v42")
                a("v_lshlrev_b32 v43, 3, v43")
                a("v_lshl_add_u32 v43, v41, 2, v43")
                a("v_and_b32 v44, 3, v42")
                a("v_add_u32 v43, v43, v44")
                a("v_mul_u32_u24 v43, 160, v43")
                a("v_lshrrev_b32 v44, 3, v40")
                a("v_lshlrev_b32 v44, 4, v44")
                a("v_lshl_add_u32 v44, v41, 3, v44")
                a("v_and_b32 v45, 7, v40")
                a("v_add_u32 v44, v44, v45")
                a("v_lshl_add_u32 v43, v44, 1, v43")
                a("v_add_u32 v43, %d, v43" % IMG)
                a("s_waitcnt vmcnt(%d)" % (16 - 16 * jj))
                for step in (8, 4, 2, 1):
                    for rr in range(step):
                        for i in (0, 2):
                            a("v_pk_add_f32 %s, %s, %s" % (vr(B + 4 * rr + i, 2), vr(B + 4 * rr + i, 2), vr(B + 4 * (rr + step) + i, 2)))
                a("v_cvt_pk_bf16_f32 v44, v%d, v%d" % (B, B + 1))
                a("v_cvt_pk_bf16_f32 v45, v%d, v%d" % (B + 2, B + 3))
                a("s_and_saveexec_b64 s[48:49], s[50:51]")
                a("ds_write_b64 v43, v[44:45]")
                a("s_mov_b64 exec, s[48:49]")
            a("s_waitcnt lgkmcnt(0)")
            a("s_barrier")
        if role == 0:
            a.nop(6)
            a("v_mov_b32 v8, v%d" % ST2)
            a("v_mov_b32 v5, v%d" % (ACC + 60))
            a("v_mov_b32 v6, v%d" % (ACC + 60))
            a("s_nop 1")
            a("v_permlane32_swap_b32 v8, v%d" % ST2)
            a("v_permlane32_swap_b32 v5, v6")
            a("s_nop 1")
            a("v_add_f32 v%d, v8, v%d" % (ST2, ST2))
            a("v_mov_b32 v8, 0x3acccccd")
            a("v_mul_f32 v12, v5, v8")
            a("v_mul_f32 v13, v%d, v8" % ST2)
            a("v_fma_f32 v13, -v12, v12, v13")
            a("v_max_f32 v13, 0, v13")
            a("v_cvt_pk_bf16_f32 v14, v12, v13")
            a("v_lshlrev_b32 v12, 16, v14")
            a("v_and_b32 v13, 0xffff0000, v14")
            a("v_add_f32 v13, 0x3727c5ac, v13")
            a("v_cvt_pk_bf16_f32 v14, v13, v13")
            a("v_and_b32 v13, 0xffff0000, v14")
            a("v_sqrt_f32 v13, v13")
            a("s_nop 0")
            a("v_cvt_pk_bf16_f32 v14, v13, v13")
            a("v_and_b32 v13, 0xffff0000, v14")
            a("v_rcp_f32 v14, v13")
            a("v_sub_f32 v13, 0, v12")
            a("v_mov_b32 v12, v13")
            a("v_mov_b32 v15, v14")
            a("ds_write_b64 v11, v[13:14]" if False else "ds_write_b32 v11, v13")
            a("ds_write_b32 v11, v14 offset:4")
            a("s_waitcnt lgkmcnt(0)")
            a("s_barrier")
            CQ = 160
            for t in range(4):
                for q in range(4):
                    if t == 3 and q == 3: continue
                    a("ds_read_b128 %s, v10 offset:%d" % (vr(CQ + 16 * t + 4 * q, 4), t * 128 + q * 32))
            a("v_mul_u32_u24 v9, 160, v4")
            a("v_lshl_add_u32 v9, v3, 4, v9")
            a("v_add_u32 v9, %d, v9" % IMG)
            a("s_waitcnt lgkmcnt(0)")
            lnfix(ACC, CQ, 60)
            for i in range(30):
                a("v_cvt_pk_bf16_f32 v%d, v%d, v%d" % (16 + i, ACC + 2 * i, ACC + 2 * i + 1))
            for tp in range(3):
                for s in range(5):
                    a("ds_read_b128 %s, v9 offset:%d" % (vr(160 + 4 * (tp * 5 + s), 4), tp * 32 * 160 + s * 32))
            for i in range(48):
                a("v_mov_b32 v%d, 0" % (64 + i))
            a("s_lshl_b32 s43, s60, 5")
            a("v_add_u32 v11, s43, v4")
            a("v_mul_u32_u24 v11, 288, v11")
            a("v_add_u32 v11, %d, v11" % TI)
            a("v_lshl_add_u32 v10, v3, 3, v11")
            a("s_waitcnt lgkmcnt(0)")
            for s in range(5):
                for tp in range(3):
                    a("v_mfma_f32_32x32x16_bf16 %s, %s, %s, %s" % (vr(64 + 16 * tp, 16), vr(160 + 4 * (tp * 5 + s), 4), vr(16 + 4 * s, 4), vr(64 + 16 * tp, 16)))
            for i in range(5):
                a("ds_write_b64 v10, %s offset:%d" % (vr(36 + 2 * i, 2), 160 + 16 * i))
            a("s_mov_b32 s50, 0"); a("s_mov_b32 s51, -1")
            a("s_mov_b32 s52, -1"); a("s_mov_b32 s53, 0")
            a("s_lshl_b32 s43, s41, 4")
            a("s_add_u32 s43, s43, s42")
            a("s_lshl_b32 s43, s43, 2")
            a("s_add_u32 s43, s43, s60")
            a("s_mul_i32 s47, s43, 5120")
            a("s_add_u32 s47, s47, %d" % PHIQ_OFF)
            a("v_mul_u32_u24 v9, 160, v4")
            a("v_mov_b32 v16, 0x%x" % LOG2E)
            a("v_mov_b32 v17, 0x%x" % LOG2E)
            a("v_mov_b32 v20, 0x3f80"); a("v_mov_b32 v21, 0"); a("v_mov_b32 v22, 0"); a("v_mov_b32 v23, 0")
            a("s_mov_b64 exec, s[52:53]")
            a("ds_write_b128 v11, v[20:23] offset:240")
            a("s_mov_b64 exec, -1")
            a.nop(8)
            for i in range(0, 40, 2):
                a("v_cvt_pk_bf16_f32 v%d, v%d, v%d" % (112 + i // 2, 64 + i, 65 + i))
            for i in range(0, 40, 2):
                a("v_lshlrev_b32 v%d, 16, v%d" % (64 + i, 112 + i // 2))
                a("v_and_b32 v%d, 0xffff0000, v%d" % (65 + i, 112 + i // 2))
            for hs in range(2):
                X = 64 + 20 * hs
                mx, mn = 24 + 4 * hs, 26 + 4 * hs
                a("v_max3_f32 v%d, v%d, v%d, v%d" % (mx, X, X + 1, X + 2))
                a("v_min3_f32 v%d, v%d, v%d, v%d" % (mn, X, X + 1, X + 2))
                for i in range(3, 19, 2):
                    a("v_max3_f32 v%d, v%d, v%d, v%d" % (mx, mx, X + i, X + i + 1))
                    a("v_min3_f32 v%d, v%d, v%d, v%d" % (mn, mn, X + i, X + i + 1))
                a("v_max_f32 v%d, v%d, v%d" % (mx, mx, X + 19))
                a("v_min_f32 v%d, v%d, v%d" % (mn, mn, X + 19))
                a("v_mul_f32 v%d, v%d, v16" % (mx, mx))
                a("v_mul_f32 v%d, v%d, v16" % (mn, mn))
                a("v_sub_f32 v%d, 0, v%d" % (mx, mx))
                a("v_mov_b32 v%d, v%d" % (mx + 1, mx))
                a("v_mov_b32 v%d, v%d" % (mn + 1, mn))
            for hs in range(2):
                X = 64 + 20 * hs
                mx, mn = 24 + 4 * hs, 26 + 4 * hs
                for sign in range(2):
                    E = 160 + 40 * hs + 20 * sign
                    for i in range(0, 20, 2):
                        if sign == 0:
                            a("v_pk_fma_f32 %s, %s, v[16:17], %s" % (vr(E + i, 2), vr(X + i, 2), vr(mx, 2)))
                        else:
                            a("v_pk_fma_f32 %s, %s, v[16:17], %s neg_lo:[1,0,0] neg_hi:[1,0,0]" % (vr(E + i, 2), vr(X + i, 2), vr(mn, 2)))
            for i in range(80):
                a("v_exp_f32 v%d, v%d" % (160 + i, 160 + i))
            a("s_nop 0")
            for gi in range(4):
                E = 160 + 20 * gi; S = 32 + 2 * gi
                a("v_pk_add_f32 %s, %s, %s" % (vr(S, 2), vr(E, 2), vr(E + 2, 2)))
                for i in range(4, 20, 2):
                    a("v_pk_add_f32 %s, %s, %s" % (vr(S, 2), vr(S, 2), vr(E + i, 2)))
            for gi in range(4):
                S = 32 + 2 * gi
                a("v_add_f32 v%d, v%d, v%d" % (S, S, S + 1))
            for gi in range(4):
                S = 32 + 2 * gi
                a("v_rcp_f32 v%d, v%d" % (S, S))
            a("s_nop 0")
            for gi in range(4):
                S = 32 + 2 * gi
                a("v_mov_b32 v%d, v%d" % (S + 1, S))
            for gi in range(4):
                E = 160 + 20 * gi; S = 32 + 2 * gi
                for i in range(0, 20, 2):
                    a("v_pk_mul_f32 %s, %s, %s" % (vr(E + i, 2), vr(E + i, 2), vr(S, 2)))
            for i in range(40):
                a("v_cvt_pk_bf16_f32 v%d, v%d, v%d" % (64 + i, 160 + 2 * i, 161 + 2 * i))
            a("s_mov_b64 exec, s[52:53]")
            for i in range(10):
                a("ds_write_b128 v11, %s offset:%d" % (vr(64 + 4 * i, 4), 16 * i))
            a("s_mov_b64 exec, -1")
            a("s_nop 1")
            for i in range(20):
                a("v_permlane32_swap_b32 v%d, v%d" % (64 + i, 84 + i))
            stamp()
            a("v_lshrrev_b32 v5, 4, v1")
            a("v_bfe_u32 v6, v1, 2, 2")
            a("v_lshl_add_u32 v5, v5, 2, v6")
            a("v_mul_u32_u24 v5, 288, v5")
            a("v_and_b32 v6, 3, v1")
            a("v_lshl_add_u32 v5, v6, 3, v5")
            a("v_add_u32 v5, %d, v5" % TI)
            a("s_lshl_b32 s43, s42, 4")
            a("s_add_u32 s43, s43, s41")
            a("s_mul_i32 s47, s43, 15360")
            a("s_add_u32 s47, s47, %d" % PART_OFF)
            a("v_lshlrev_b32 v8, 4, v1")
            def lsync(idx):
                lp = a.newlabel("lsync")
                a("v_mov_b32 v6, %d" % (CNT + 4 * idx))
                a("v_mov_b32 v7, 1")
                a("s_waitcnt lgkmcnt(0)")
                a("s_mov_b64 exec, 1")
                a("ds_add_u32 v6, v7")
                a("s_mov_b64 exec, -1")
                a.label(lp)
                a("ds_read_b32 v7, v6")
                a("s_waitcnt lgkmcnt(0)")
                a("v_readfirstlane_b32 s43, v7")
                a("s_nop 3")
                a("s_cmp_lt_u32 s43, 4")
                a("s_cbranch_scc1 %s" % lp)
            lsync(0)
            for jj in range(4):
                a("s_add_u32 s54, s60, %d" % (4 * jj))
                a("s_min_u32 s54, s54, 14")
                a("s_mul_i32 s55, s54, 11")
                a("s_lshr_b32 s55, s55, 5")
                a("s_mul_i32 s56, s55, 3")
                a("s_sub_u32 s56, s54, s56")
                a("s_lshl_b32 s55, s55, 5")
                a("s_lshl_b32 s56, s56, 5")
                a("s_add_u32 s56, s56, 160")
                a("v_add_u32 v6, s55, v5")
                a("v_add_u32 v7, s56, v5")
                B = 104 + 32 * jj
                for kt in range(4):
                    for rd in range(2):
                        a("ds_read_b64_tr_b16 %s, v6 offset:%d" % (vr(B + 8 * kt + 2 * rd, 2), (32 * kt + 16 * rd) * 288))
                        a("ds_read_b64_tr_b16 %s, v7 offset:%d" % (vr(B + 4 + 8 * kt + 2 * rd, 2), (32 * kt + 16 * rd) * 288))
                a("s_lshl_b32 s54, s54, 10")
                a("s_add_u32 s%d, s54, s47" % (68 + jj))
            for e in range(16):
                a("v_mov_b32 v%d, 0" % (16 + e))
            a("s_waitcnt lgkmcnt(0)")
            for kt in range(4):
                for jj in range(4):
                    B = 104 + 32 * jj
                    a("v_mfma_f32_16x16x32_bf16 %s, %s, %s, %s" % (vr(16 + 4 * jj, 4), vr(B + 8 * kt, 4), vr(B + 4 + 8 * kt, 4), vr(16 + 4 * jj, 4)))
            a.nop(8)
            for jj in range(4):
                a("buffer_store_dwordx4 %s, v8, s[32:35], s%d offen sc1" % (vr(16 + 4 * jj, 4), 68 + jj))
            a("v_mov_b32 v32, 0"); a("v_mov_b32 v33, 0"); a("v_mov_b32 v34, 0"); a("v_mov_b32 v35, 0")
            a("v_lshlrev_b32 v5, 4, v0")
            a("v_add_u32 v5, %d, v5" % IMG)
            a("ds_write_b128 v5, v[32:35]")
            a("ds_write_b128 v5, v[32:35] offset:4096")
            a("ds_write_b128 v5, v[32:35] offset:8192")
            stamp()
            a("s_waitcnt vmcnt(0)")
            stamp()
            lsync(1)
            a("s_mov_b32 s52, s58")
            a("s_and_b32 s53, s59, 0xffff")
            a("s_mov_b32 s54, 256")
            a("s_mov_b32 s55, 0x00020000")
            a("s_lshl_b32 s56, s42, 2")
            a("s_add_u32 s56, s56, 64")
            a("v_mov_b32 v6, 1")
            a("v_mov_b32 v7, 0")
            lsk = a.newlabel("nopoll")
            a("s_cmp_lg_u32 s40, 0")
            a("s_cbranch_scc1 %s" % lsk)
            stamp()
            if STAMP: a("s_memrealtime s[100:101]")
            a("s_mov_b64 exec, 1")
            a("buffer_atomic_add v6, v7, s[52:55], s56 offen sc0 sc1")
            a("s_lshl_b32 s46, s42, 12")
            a("s_add_u32 s46, s46, %d" % FLG_OFF)
            a("s_lshl_b32 s44, s41, 8")
            a("s_add_u32 s44, s44, s46")
            a("s_waitcnt vmcnt(0)")
            a("v_readfirstlane_b32 s43, v6")
            a("s_nop 3")
            a("s_and_b32 s43, s43, 15")
            l2 = a.newlabel("notlast")
            a("s_cmp_lg_u32 s43, 15")
            a("s_cbranch_scc1 %s" % l2)
            a("s_mov_b64 exec, 0xffff")
            a("v_lshlrev_b32 v6, 8, v1")
            a("v_mov_b32 v9, 1")
            a("buffer_store_dword v9, v6, s[32:35], s46 offen sc1")
            a("s_mov_b64 exec, 1")
            a.label(l2)
            lp = a.newlabel("kpoll")
            a.label(lp)
            a("s_sleep 2")
            a("buffer_load_dword v6, v7, s[32:35], s44 offen sc1")
            a("s_waitcnt vmcnt(0)")
            a("v_readfirstlane_b32 s43, v6")
            a("s_nop 3")
            a("s_cmp_lg_u32 s43, 1")
            a("s_cbranch_scc1 %s" % lp)
            a("s_mov_b64 exec, -1")
            stamp()
            a.label(lsk)
            kv_gather()
            a("v_mul_u32_u24 v9, 160, v4")
            a("v_lshl_add_u32 v9, v3, 4, v9")
            a("v_add_u32 v9, %d, v9" % IMG)
            for u in range(2):
                for s_ in range(5):
                    a("ds_read_b128 %s, v9 offset:%d" % (vr(160 + 4 * (u * 5 + s_), 4), u * 32 * 160 + s_ * 32))
            for i in range(32):
                a("v_mov_b32 v%d, 0" % (128 + i))
            a("s_lshl_b32 s43, s41, 1")
            a("s_lshr_b32 s47, s60, 1")
            a("s_add_u32 s43, s43, s47")
            a("s_mul_i32 s43, s43, %d" % (68 * 4096))
            a("s_and_b32 s47, s60, 1")
            a("s_lshl_b32 s47, s47, 11")
            a("s_add_u32 s47, s47, s43")
            a("s_mul_i32 s43, s42, 40")
            a("v_mul_u32_u24 v9, 20, v3")
            a("v_add_u32 v9, s43, v9")
            a("v_lshlrev_b32 v10, 6, v4")
            for m in range(5):
                a("v_add_u32 v11, %d, v9" % (4 * m))
                a("v_lshrrev_b32 v12, 5, v11")
                a("v_lshlrev_b32 v12, 12, v12")
                a("v_and_b32 v11, 31, v11")
                a("v_lshl_add_u32 v12, v11, 1, v12")
                a("v_add_u32 v%d, v12, v10" % (40 + m))
            a("s_waitcnt lgkmcnt(0)")
            for s_ in range(5):
                for u in range(2):
                    a("v_mfma_f32_32x32x16_bf16 %s, %s, %s, %s" % (vr(128 + 16 * u, 16), vr(160 + 4 * (u * 5 + s_), 4), vr(84 + 4 * s_, 4), vr(128 + 16 * u, 16)))
            a.nop(12)
            for i in range(0, 20, 2):
                a("v_cvt_pk_bf16_f32 v%d, v%d, v%d" % (48 + i // 2, 128 + i, 129 + i))
            a("v_cvt_pk_bf16_f32 v58, v148, v148")
            a("v_and_b32 v58, 0xffff0000, v58")
            a("v_add_f32 v58, 0x358637bd, v58")
            a("v_cvt_pk_bf16_f32 v58, v58, v58")
            a("v_and_b32 v58, 0xffff0000, v58")
            a("v_rcp_f32 v58, v58")
            for i in range(0, 20, 2):
                a("v_lshlrev_b32 v%d, 16, v%d" % (128 + i, 48 + i // 2))
                a("v_and_b32 v%d, 0xffff0000, v%d" % (129 + i, 48 + i // 2))
            a("v_mov_b32 v59, v58")
            for i in range(0, 20, 2):
                a("v_pk_mul_f32 %s, %s, v[58:59]" % (vr(128 + i, 2), vr(128 + i, 2)))
            for i in range(0, 20, 2):
                a("v_cvt_pk_bf16_f32 v%d, v%d, v%d" % (48 + i // 2, 128 + i, 129 + i))
            for m in range(5):
                a("buffer_store_dwordx2 %s, v%d, s[32:35], s47 offen" % (vr(48 + 2 * m, 2), 40 + m))
            if STAMP:
                a("s_waitcnt vmcnt(0)")
                stamp()
                a("s_waitcnt lgkmcnt(0)")
                a("s_cmp_lg_u32 s40, 0")
                a("s_cbranch_scc1 L_k1_end")
                a("v_mov_b32 v2, s98")
                a("v_mov_b32 v3, s100")
                a("s_lshl_b32 s43, s2, 3")
                a("s_add_u32 s43, s43, %d" % (30 * 1024 * 1024))
                a("v_mov_b32 v5, 0")
                a("buffer_store_dwordx2 v[2:3], v5, s[32:35], s43 offen")
                a("s_cmp_lg_u32 s2, 0")
                a("s_cbranch_scc1 L_k1_end")
                srd(a, 16, 58, 256)
                a("v_mov_b32 v2, 0")
                for i in range(nst[0]):
                    a("s_sub_u32 s43, s%d, s78" % (78 + 2 * i))
                    a("v_mov_b32 v3, s43")
                    a("buffer_store_dword v3, v2, s[16:19], 0 offen offset:%d" % (4 * i))
            a("s_endpgm")
        else:
            a("s_waitcnt lgkmcnt(0)")
            a("s_barrier")
            a("ds_read_b32 v12, v11")
            a("ds_read_b32 v14, v11 offset:4")
            def cq(t, q):
                i = 16 * t + 4 * q
                return 160 + i if i < 64 else 16 + (i - 64)
            for t in range(6):
                for q in range(4):
                    a("ds_read_b128 %s, v10 offset:%d" % (vr(cq(t, q), 4), t * 128 + q * 32))
            a("s_lshl_b32 s43, s41, 1")
            a("s_lshr_b32 s47, s60, 1")
            a("s_add_u32 s43, s43, s47")
            a("s_mul_i32 s43, s43, 68")
            a("s_mul_i32 s47, s42, 3")
            a("s_add_u32 s43, s43, s47")
            a("s_add_u32 s43, s43, 20")
            a("s_lshl_b32 s43, s43, 12")
            a("s_and_b32 s47, s60, 1")
            a("s_lshl_b32 s47, s47, 11")
            a("s_add_u32 s47, s47, s43")
            a("v_lshlrev_b32 v5, 6, v4")
            a("v_lshl_add_u32 v5, v3, 3, v5")
            a("v_mov_b32 v48, 0xc0135761"); a("v_mov_b32 v49, 0xc0135761")
            a("v_mov_b32 v50, 0x3d372713"); a("v_mov_b32 v51, 0x3d372713")
            a("v_mov_b32 v52, 1.0"); a("v_mov_b32 v53, 1.0")
            a("s_waitcnt lgkmcnt(0)")
            a("v_mov_b32 v13, v12")
            a("v_mov_b32 v15, v14")
            for t in range(6):
                lnfix(ACC + 16 * t, cq(t, 0), 16)
            for i in range(0, 96, 2):
                a("v_cvt_pk_bf16_f32 v%d, v%d, v%d" % (160 + i // 2, ACC + i, ACC + i + 1))
            for i in range(0, 96, 2):
                a("v_lshlrev_b32 v%d, 16, v%d" % (ACC + i, 160 + i // 2))
                a("v_and_b32 v%d, 0xffff0000, v%d" % (ACC + i + 1, 160 + i // 2))
            for i in range(3):
                G = ACC + 32 * i; T = 160 + 16 * i
                for e in range(0, 16, 2):
                    a("v_pk_mul_f32 %s, %s, %s" % (vr(T + e, 2), vr(G + e, 2), vr(G + e, 2)))
                for e in range(0, 16, 2):
                    a("v_pk_fma_f32 %s, %s, v[50:51], v[52:53]" % (vr(T + e, 2), vr(T + e, 2)))
                for e in range(0, 16, 2):
                    a("v_pk_mul_f32 %s, %s, %s" % (vr(T + e, 2), vr(T + e, 2), vr(G + e, 2)))
                for e in range(0, 16, 2):
                    a("v_pk_mul_f32 %s, %s, v[48:49]" % (vr(T + e, 2), vr(T + e, 2)))
            for i in range(48):
                a("v_exp_f32 v%d, v%d" % (160 + i, 160 + i))
            a("s_nop 0")
            for e in range(0, 48, 2):
                a("v_pk_add_f32 %s, %s, v[52:53]" % (vr(160 + e, 2), vr(160 + e, 2)))
            for i in range(48):
                a("v_rcp_f32 v%d, v%d" % (160 + i, 160 + i))
            a("s_nop 0")
            for i in range(3):
                G = ACC + 32 * i; T = 160 + 16 * i
                for e in range(0, 16, 2):
                    a("v_pk_mul_f32 %s, %s, %s" % (vr(T + e, 2), vr(T + e, 2), vr(G + e, 2)))
            for e in range(0, 48, 2):
                a("v_cvt_pk_bf16_f32 v%d, v%d, v%d" % (16 + e // 2, 160 + e, 161 + e))
            for e in range(0, 48, 2):
                a("v_lshlrev_b32 v%d, 16, v%d" % (160 + e, 16 + e // 2))
                a("v_and_b32 v%d, 0xffff0000, v%d" % (161 + e, 16 + e // 2))
            for i in range(3):
                U = ACC + 32 * i + 16; T = 160 + 16 * i
                for e in range(0, 16, 2):
                    a("v_pk_mul_f32 %s, %s, %s" % (vr(T + e, 2), vr(T + e, 2), vr(U + e, 2)))
            for e in range(0, 48, 2):
                a("v_cvt_pk_bf16_f32 v%d, v%d, v%d" % (16 + e // 2, 160 + e, 161 + e))
            for i in range(3):
                for q in range(4):
                    a("buffer_store_dwordx2 %s, v5, s[32:35], s47 offen offset:%d" % (vr(16 + 8 * i + 2 * q, 2), q * 16))
                a("s_add_u32 s47, s47, 4096")
            kv_gather()
    a.label("L_k1_end")
    a("s_endpgm")
    return dict(name=name, vgpr=256, sgpr=102, grid=256, block=512, lds=LDS, accum=256)
```

```python
from asmlib import *
from layout import *
import os
EXP = os.environ.get('K1EXP', '')

class Vm:
    def __init__(self, a):
        self.a = a; self.q = []
    def issue(self, tag):
        self.q.append(tag)
    def wait(self, tags, extra=""):
        if isinstance(tags, str): tags = [tags]
        idxs = [i for i, t in enumerate(self.q) if t in tags]
        if not idxs:
            if extra: self.a("s_waitcnt" + extra)
            return
        idx = max(idxs)
        n = len(self.q) - 1 - idx
        self.a("s_waitcnt vmcnt(%d)%s" % (min(n, 63), extra))
        self.q = self.q[idx + 1:] if n <= 63 else self.q[len(self.q) - 63:]

LOG2E = 0x3fb8aa3b
STAMP = 'stamp' in EXP
def gen_k1(a):
    nst = [0]
    def stamp():
        if not STAMP: return
        a("s_memtime s[%d:%d]" % (78 + 2 * nst[0], 79 + 2 * nst[0]))
        nst[0] += 1
    name = "k1_kernel"
    kernel_begin(a, name)
    WSL = 20480; XS = 4 * WSL
    IMG = XS + 3 * 16384
    CS = IMG + 15360
    STT = CS + 1536
    CNT = STT + 1024
    LDS = CNT + 64
    TI = 0
    ACC = 64
    NEGM, RSTD = 12, 14
    TRB0, TRB1, VWA, VWF, VX0, VX1, XR0, ST2, CSV, TMP = 236, 237, 238, 239, 240, 241, 242, 246, 248, 252
    a("s_cmp_ge_u32 s2, 256")
    a("s_cbranch_scc1 L_k1_end")
    stamp()
    if STAMP: a("s_memrealtime s[98:99]")
    a("s_load_dwordx4 s[4:7], s[0:1], 0")
    a("s_load_dwordx2 s[10:11], s[0:1], 40")
    a("s_load_dwordx2 s[12:13], s[0:1], 48")
    a("s_load_dwordx2 s[8:9], s[0:1], 16")
    a("s_load_dwordx2 s[14:15], s[0:1], 80")
    a("s_load_dwordx2 s[58:59], s[0:1], 72")
    a("v_lshrrev_b32 v2, 6, v0")
    a("v_and_b32 v1, 63, v0")
    a("s_nop 0")
    a("v_readfirstlane_b32 s40, v2")
    a("s_and_b32 s42, s2, 7")
    a("s_lshr_b32 s43, s2, 7")
    a("s_lshl_b32 s43, s43, 3")
    a("s_or_b32 s42, s42, s43")
    a("s_bfe_u32 s41, s2, 0x40003")
    a("s_and_b32 s60, s40, 3")
    a("s_lshr_b32 s61, s40, 2")
    a("v_lshrrev_b32 v3, 5, v1")
    a("v_and_b32 v4, 31, v1")
    a("v_lshrrev_b32 v5, 2, v1")
    a("v_and_b32 v6, 3, v1")
    a("s_lshl_b32 s43, s60, 2")
    a("v_add_u32 v7, s43, v6")
    a("v_min_u32 v7, 14, v7")
    a("v_mul_u32_u24 v8, 13, v7")
    a("v_lshrrev_b32 v8, 6, v8")
    a("v_mul_u32_u24 v9, 5, v8")
    a("v_sub_u32 v9, v7, v9")
    a("v_lshrrev_b32 v10, 1, v8")
    a("v_sub_u32 v10, 1, v10")
    a("v_xor_b32 v8, v8, v10")
    a("v_mul_u32_u24 v8, 1280, v8")
    a("v_lshl_add_u32 v8, v9, 4, v8")
    a("v_mul_u32_u24 v9, 3840, v5")
    a("s_mul_i32 s43, s42, 80")
    a("v_add3_u32 v%d, v8, v9, s43" % VWA)
    a("v_mul_u32_u24 v9, 3072, v5")
    a("v_lshl_add_u32 v9, v6, 4, v9")
    a("s_mul_i32 s43, s42, 192")
    a("v_add_u32 v%d, s43, v9" % VWF)
    a("v_lshrrev_b32 v5, 3, v1")
    a("v_and_b32 v6, 7, v1")
    a("v_lshrrev_b32 v7, 1, v5")
    a("v_xor_b32 v8, v6, v7")
    a("v_mul_u32_u24 v9, 1280, v5")
    a("v_lshl_add_u32 v%d, v8, 4, v9" % VX0)
    a("v_xor_b32 v8, 4, v8")
    a("v_lshl_add_u32 v%d, v8, 4, v9" % VX1)
    a("v_add_u32 v%d, %d, v%d" % (VX1, 8 * 1280, VX1))
    a("s_lshl_b32 s45, s41, 7")
    a("s_lshl_b32 s43, s40, 4")
    a("s_add_u32 s45, s45, s43")
    a("s_mul_i32 s45, s45, 1280")
    a("s_lshl_b32 s57, s40, 11")
    a("s_add_u32 s57, s57, %d" % XS)
    a("s_lshl_b32 s46, s60, 11")
    a("s_cmp_eq_u32 s60, 3")
    a("s_cselect_b32 s48, 0x77777777, -1")
    a("s_mov_b32 s49, s48")
    a("s_lshl_b32 s43, s60, 1")
    a("s_add_u32 s43, s43, 4")
    a("s_cmp_eq_u32 s61, 0")
    a("s_cselect_b32 s62, s60, s43")
    a("s_add_u32 s43, s41, s42")
    a("s_mul_i32 s44, s43, 26")
    a("s_lshr_b32 s44, s44, 8")
    a("s_mul_i32 s44, s44, 10")
    a("s_sub_u32 s43, s43, s44")
    a("s_mul_i32 s66, s43, %d" % (64 * 3840))
    a("s_mul_i32 s67, s43, %d" % (64 * 3072))
    a("s_lshl_b32 s65, s43, 7")
    a("s_waitcnt lgkmcnt(0)")
    srd(a, 16, 4, 2048 * 1280)
    srd(a, 20, 6, 640 * 3840)
    for n in range(2):
        S = 24 + 4 * n
        a("s_add_u32 s43, s62, %d" % n)
        a("s_lshr_b32 s44, s43, 1")
        a("s_and_b32 s47, s43, 1")
        a("s_bitcmp1_b32 s44, 0")
        a("s_cselect_b32 s%d, s12, s10" % S)
        a("s_cselect_b32 s%d, s13, s11" % (S + 1))
        a("s_and_b32 s%d, s%d, 0xffff" % (S + 1, S + 1))
        a("s_mov_b32 s%d, %d" % (S + 2, 640 * 3072))
        a("s_mov_b32 s%d, 0x00020000" % (S + 3))
        a("s_mul_i32 s%d, s47, %d" % (72 + n, 16 * 3072))
        a("s_lshr_b32 s43, s44, 1")
        a("s_lshl_b32 s43, s43, 6")
        a("s_add_u32 s%d, s%d, s43" % (72 + n, 72 + n))
        a("s_lshl_b32 s%d, s44, 11" % (75 + n))
        a("s_lshl_b32 s43, s47, 10")
        a("s_add_u32 s%d, s%d, s43" % (75 + n, 75 + n))
        a("s_add_u32 s%d, s%d, 8192" % (75 + n, 75 + n))

    def dma_w(role, st):
        out = []; tag = "W%d" % st; slot = st % 4
        if role == 0:
            out.append("s_mov_b32 s44, s66")
            out.append("s_mov_b64 exec, s[48:49]")
            for j in range(2):
                out.append("s_add_u32 m0, s46, %d" % (slot * WSL + j * 1024))
                out.append("s_nop 0" if j == 0 else "s_add_u32 s44, s44, %d" % (16 * 3840))
                out.append(("buffer_load_dwordx4 v%d, s[20:23], s44 offen lds" % VWA, tag))
            out.append("s_mov_b64 exec, -1")
            out.append("s_add_u32 s66, s66, %d" % (32 * 3840))
            out.append("s_cmp_ge_u32 s66, %d" % (640 * 3840))
            out.append("s_cselect_b32 s66, 0, s66")
        for n in range(1 if role == 0 else 2):
            out.append("s_add_u32 m0, s%d, %d" % (75 + n, slot * WSL))
            out.append("s_add_u32 s44, s%d, s67" % (72 + n))
            out.append(("buffer_load_dwordx4 v%d, s[%d:%d], s44 offen lds" % (VWF, 24 + 4 * n, 27 + 4 * n), tag))
        out.append("s_add_u32 s67, s67, %d" % (32 * 3072))
        out.append("s_cmp_ge_u32 s67, %d" % (640 * 3072))
        out.append("s_cselect_b32 s67, 0, s67")
        return out
    def dma_x(xb):
        out = []; tag = "X%d" % xb; slot = xb % 3
        out.append("s_add_u32 s44, s45, s65")
        for g in range(2):
            out.append("s_add_u32 m0, s57, %d" % (slot * 16384 + g * 1024))
            out.append("s_nop 0")
            out.append(("buffer_load_dwordx4 v%d, s[16:19], s44 offen lds" % (VX0 + g), tag))
        out.append("s_add_u32 s65, s65, 128")
        out.append("s_cmp_ge_u32 s65, 1280")
        out.append("s_cselect_b32 s65, 0, s65")
        return out

    a("s_cmp_eq_u32 s61, 1")
    a("s_cbranch_scc1 L_k1_roleB")
    for role in range(2):
        vm = Vm(a)
        def emit(l):
            if isinstance(l, tuple):
                a(l[0]); vm.issue(l[1])
            elif l == "WAIT_CSP": vm.wait("CSP")
            elif l == "WAIT_POLL": vm.wait("POLL")
            else:
                a(l)
        if role == 1:
            a.label("L_k1_roleB")
        nt = 4 if role == 0 else 6
        t0 = 0 if role == 0 else 4
        WF = [16, 40]
        XF = [32, 56] if role == 0 else [160, 164]
        for l in dma_w(role, 0): emit(l)
        for l in dma_x(0): emit(l)
        for l in dma_w(role, 1): emit(l)
        srd(a, 32, 14, 32 * 1024 * 1024)
        srd(a, 36, 8, 32 * 800)
        a("v_lshlrev_b32 v5, 3, v3")
        a("v_bfe_u32 v6, v1, 2, 2")
        a("v_add_u32 v5, v5, v6")
        a("v_lshlrev_b32 v5, 6, v5")
        a("v_bfe_u32 v6, v1, 4, 1")
        a("v_lshl_add_u32 v5, v6, 5, v5")
        a("v_and_b32 v6, 3, v1")
        a("v_lshl_add_u32 v%d, v6, 3, v5" % TRB0)
        a("v_add_u32 v%d, %d, v%d" % (TRB1, 2 * WSL, TRB0))
        a("s_lshl_b32 s43, s60, 5")
        a("v_add_u32 v5, s43, v4")
        a("v_lshlrev_b32 v5, 7, v5")
        a("v_add_u32 v5, %d, v5" % XS)
        a("v_bfe_u32 v6, v4, 1, 3")
        for ks in range(4):
            a("v_add_u32 v7, %d, v3" % (2 * ks))
            a("v_xor_b32 v7, v7, v6")
            a("v_lshl_add_u32 v%d, v7, 4, v5" % (XR0 + ks))
        a("s_lshl_b32 s63, s60, 2")
        a("s_add_u32 s64, s60, 4")
        a("s_min_u32 s64, s64, 5")
        a("s_lshl_b32 s64, s64, 2")
        if role == 0:
            a("s_lshl_b32 s43, s42, 12")
            a("s_lshl_b32 s44, s41, 8")
            a("s_add_u32 s43, s43, s44")
            a("s_add_u32 s43, s43, %d" % FLG_OFF)
            a("v_mov_b32 v5, 0")
            a("s_mov_b64 exec, 1")
            a("buffer_store_dword v5, v5, s[32:35], s43 offen sc1")
            vm.issue("FLG")
            a("s_mov_b64 exec, -1")
            a("s_mul_i32 s43, s42, 1600")
            PH = 64
            for it in range(7):
                a("v_add_u32 v5, %d, v0" % (256 * it))
                a("v_min_u32 v5, 1599, v5")
                a("v_mul_u32_u24 v6, 1311, v5")
                a("v_lshrrev_b32 v%d, 19, v6" % (72 + it))
                a("v_mul_u32_u24 v7, 400, v%d" % (72 + it))
                a("v_sub_u32 v%d, v5, v7" % (80 + it))
                a("v_and_b32 v8, 1, v%d" % (72 + it))
                a("v_mul_u32_u24 v8, 400, v8")
                a("v_add_u32 v8, v8, v%d" % (80 + it))
                a("v_lshlrev_b32 v8, 1, v8")
                a("buffer_load_ushort v%d, v8, s[36:39], s43 offen" % (PH + it))
                vm.issue("PH")
            for it in range(7):
                sl = 72 + it; rem = 80 + it
                a("v_mul_u32_u24 v8, 3277, v%d" % rem)
                a("v_lshrrev_b32 v8, 16, v8")
                a("v_mul_u32_u24 v9, 20, v8")
                a("v_sub_u32 v9, v%d, v9" % rem)
                a("v_and_b32 v10, 1, v%d" % sl)
                a("v_mul_u32_u24 v10, 5, v10")
                a("v_lshrrev_b32 v11, 2, v9")
                a("v_add_u32 v10, v10, v11")
                a("v_lshlrev_b32 v10, 3, v10")
                a("v_lshrrev_b32 v11, 1, v%d" % sl)
                a("v_lshl_add_u32 v10, v11, 2, v10")
                a("v_and_b32 v11, 3, v9")
                a("v_add_u32 v10, v10, v11")
                a("v_mul_u32_u24 v10, 160, v10")
                a("v_mul_u32_u24 v11, 20, v%d" % sl)
                a("v_add_u32 v11, v11, v8")
                a("v_and_b32 v13, 0x73, v11")
                a("v_bfe_u32 v14, v11, 2, 1")
                a("v_lshl_add_u32 v13, v14, 3, v13")
                a("v_bfe_u32 v14, v11, 3, 1")
                a("v_lshl_add_u32 v13, v14, 2, v13")
                a("v_lshl_add_u32 v10, v13, 1, v10")
                a("v_add_u32 v%d, %d, v10" % (88 + it, IMG))
        else:
            a("v_mov_b32 v8, 0"); a("v_mov_b32 v9, 0"); a("v_mov_b32 v10, 0"); a("v_mov_b32 v11, 0")
            a("v_subrev_u32 v7, 256, v0")
            a("v_lshlrev_b32 v5, 4, v7")
            a("v_add_u32 v5, %d, v5" % IMG)
            for i in range(3):
                a("ds_write_b128 v5, v[8:11] offset:%d" % (i * 4096))
            a("v_cmp_gt_u32 vcc, 192, v7")
            a("s_and_saveexec_b64 s[50:51], vcc")
            a("ds_write_b128 v5, v[8:11] offset:%d" % (3 * 4096))
            a("s_mov_b64 exec, s[50:51]")
            a("v_mov_b32 v5, %d" % CNT)
            a("ds_write_b64 v5, v[8:9]")
            a("ds_write_b64 v5, v[8:9] offset:8")

            a("v_lshrrev_b32 v5, 5, v7")
            a("v_mul_u32_u24 v5, %d, v5" % WSL)
            a("v_lshl_add_u32 v5, v4, 6, v5")
            a("v_add_u32 v5, %d, v5" % (3 * 2048 + 48))
            a("v_mov_b32 v8, 0x3f80")
            a("v_cmp_gt_u32 vcc, 128, v7")
            a("s_and_saveexec_b64 s[50:51], vcc")
            a("ds_write_b128 v5, v[8:11]")
            a("s_mov_b64 exec, s[50:51]")
        for i in range(6):
            a("v_mov_b32 v%d, 0" % (ST2 + i))

        srd(a, 52, 58, 256) if False else None
        a("s_mov_b32 s52, s58")
        a("s_and_b32 s53, s59, 0xffff")
        a("s_mov_b32 s54, 256")
        a("s_mov_b32 s55, 0x00020000")
        a("s_lshl_b32 s56, s42, 2")
        a("s_add_u32 s56, s56, 128")
        a("s_lshl_b32 s43, s42, 4")
        a("s_mul_i32 s50, s43, 1536")
        a("s_add_u32 s50, s50, %d" % CSP_OFF)
        a("s_mul_i32 s51, s41, 1536")
        a("s_add_u32 s51, s51, s50")
        a("s_lshl_b32 s43, s60, 7")
        a("s_add_u32 s51, s51, s43")
        if role: a("s_add_u32 s51, s51, 512")
        a("v_lshlrev_b32 v235, 6, v2")
        a("v_add_u32 v235, v235, v1")
        a("v_min_u32 v235, 319, v235")
        a("v_lshlrev_b32 v235, 2, v235")
        if role == 0:
            a("s_lshl_b32 s62, s41, 13")
            a("s_add_u32 s62, s62, %d" % SSP_OFF)
            a("s_lshl_b32 s70, s41, 2")
            a("s_lshl_b32 s43, s60, 5")
            a("v_add_u32 v188, s43, v4")
            a("v_lshlrev_b32 v188, 2, v188")
        def publish():
            out = []
            for k in range(1 if role == 0 else 2):
                out.append("v_add_f32 v%d, v%d, v%d" % (CSV + 2 * k, CSV + 2 * k, CSV + 2 * k + 1))
                out.append("v_mov_b32 v%d, v%d" % (CSV + 2 * k + 1, CSV + 2 * k))
                out.append("s_nop 1")
                out.append("v_permlane32_swap_b32 v%d, v%d" % (CSV + 2 * k + 1, CSV + 2 * k))
                out.append("s_nop 1")
                out.append("v_add_f32 v%d, v%d, v%d" % (CSV + 2 * k, CSV + 2 * k, CSV + 2 * k + 1))
                out.append("v_lshlrev_b32 v%d, 2, v4" % TMP)
                out.append(("buffer_store_dword v%d, v%d, s[32:35], s51 offen offset:%d sc1" % (CSV + 2 * k, TMP, 512 * k), "CSP"))
            if role == 0:
                out.append("v_add_f32 v%d, v%d, v%d" % (ST2, ST2, ST2 + 1))
                out.append("v_mov_b32 v%d, v%d" % (ST2 + 1, ST2))
                out.append("s_lshl_b32 s43, s42, 9")
                out.append("s_add_u32 s43, s43, s62")
                out.append("v_permlane32_swap_b32 v%d, v%d" % (ST2 + 1, ST2))
                out.append("s_nop 1")
                out.append("v_add_f32 v%d, v%d, v%d" % (ST2, ST2, ST2 + 1))
                out.append(("buffer_store_dword v%d, v188, s[32:35], s43 offen sc1" % ST2, "CSP"))
            return out
        def signal():
            if role: return []
            out = []
            out.append("s_cmp_lt_u32 s41, 10")
            out.append("s_cselect_b32 s43, 1, 0")
            out.append("s_cmp_eq_u32 s40, 0")
            out.append("s_cselect_b32 s43, s43, 0")
            out.append("v_mov_b32 v%d, 1" % TMP)
            out.append("v_mov_b32 v%d, 0" % (TMP + 1))
            out.append("s_mov_b32 exec_lo, s43")
            out.append("s_mov_b32 exec_hi, 0")
            out.append(("buffer_atomic_add v%d, v%d, s[52:55], s56 offen sc1" % (TMP, TMP + 1), "SIG"))
            out.append("s_cmp_lt_u32 s42, 10")
            out.append("s_cselect_b32 s43, 1, 0")
            out.append("s_cmp_eq_u32 s40, 0")
            out.append("s_cselect_b32 s43, s43, 0")
            out.append("s_mov_b32 exec_lo, s43")
            out.append(("buffer_atomic_add v%d, v%d, s[52:55], s70 offen sc1" % (TMP, TMP + 1), "SIG"))
            out.append("s_mov_b64 exec, -1")
            return out
        def poll():
            out = ["v_mov_b32 v%d, 0" % (TMP + 1), ("buffer_load_dword v234, v%d, s[52:55], s56 offen sc1" % (TMP + 1), "POLL")]
            if role == 0: out.append(("buffer_load_dword v189, v%d, s[52:55], s70 offen sc1" % (TMP + 1), "POLL"))
            return out
        def gather(inloop):
            out = []
            if inloop:
                out.append("WAIT_POLL")
                if role == 0: out.append("v_min_u32 v234, v234, v189")
                out.append("s_nop 0")
                out.append("v_readfirstlane_b32 s47, v234")
            out.append("s_mov_b32 s43, s50")
            for i in range(10):
                out.append(("buffer_load_dword v%d, v235, s[32:35], s43 offen sc1" % (224 + i), "GAT"))
                if i < 9: out.append("s_add_u32 s43, s43, 1536")
            if role == 0:
                for i in range(8):
                    out.append(("buffer_load_dword v%d, v188, s[32:35], s62 offen offset:%d sc1" % (190 + i, 512 * i), "GAT"))
                out.append("s_add_u32 s43, s62, 4096")
                for i in range(8, 10):
                    out.append(("buffer_load_dword v%d, v188, s[32:35], s43 offen offset:%d sc1" % (190 + i, 512 * (i - 8)), "GAT"))
            return out
        def frag_reads(st, kk, par):
            fs = WF[par]; slot = st % 4
            base = TRB0 if slot < 2 else TRB1
            out = ["ds_read_b128 %s, v%d offset:%d" % (vr(XF[par], 4), XR0 + 2 * (st & 1) + kk, ((st >> 1) % 3) * 16384)]
            for t in range(nt):
                for rd in range(2):
                    out.append("ds_read_b64_tr_b16 %s, v%d offset:%d" % (vr(fs + 4 * t + 2 * rd, 2), base, (slot & 1) * WSL + (t0 + t) * 2048 + kk * 1024 + rd * 256))
            return out
        vm.wait(["W0", "X0"], " lgkmcnt(0)")
        a("s_barrier")
        if role == 0: stamp()
        for l in frag_reads(0, 0, 0): a(l)
        if role == 0:
            vm.wait("PH")
            for it in range(7):
                a("ds_write_b16 v%d, v%d" % (88 + it, 64 + it))
            a("s_nop 1")
        for i in range(16 * nt):
            a("v_mov_b32 v%d, 0" % (ACC + i))
        for st in range(20):
            for kk in range(2):
                g = st * 2 + kk
                par = g & 1
                cur = WF[par]
                a("s_waitcnt lgkmcnt(0)")
                bar = False; rd = []; dm = []
                if kk == 0:
                    rd = frag_reads(st, 1, par ^ 1)
                    if st == 0: dm = dma_x(1) + dma_w(role, 2)
                    if st == 1: dm = dma_x(2)
                elif st < 19:
                    bar = True
                    rd = frag_reads(st + 1, 0, par ^ 1)
                    if st == 0: dm = dma_w(role, 3)
                    if st + 4 < 20: dm = dm + dma_w(role, st + 4)
                    if (st & 1) and (st >> 1) + 3 < 10: dm = dm + dma_x((st >> 1) + 3)
                groups = []
                for k in range((1 if role == 0 else 2) if g < 4 else 0):
                    for dd in range(2):
                        gq = ["s_set_gpr_idx_on s%d, 0x2" % (63 + k)]
                        for d in (2 * dd, 2 * dd + 1):
                            gq.append("v_lshlrev_b32 v%d, 16, v%d" % (TMP + 2 * (d & 1), cur + d))
                            gq.append("v_and_b32 v%d, 0xffff0000, v%d" % (TMP + 2 * (d & 1) + 1, cur + d))
                        gq.append("s_set_gpr_idx_off")
                        for d in range(2):
                            gq.append("v_pk_add_f32 %s, %s, %s" % (vr(CSV + 2 * k, 2), vr(CSV + 2 * k, 2), vr(TMP + 2 * d, 2)))
                        groups.append(gq)
                if role == 0 and g < 4:
                    xt = XF[par]
                    for dd in range(2):
                        gq = []
                        for d in (2 * dd, 2 * dd + 1):
                            gq.append("v_lshlrev_b32 v%d, 16, v%d" % (TMP + 2 * (d & 1), xt + d))
                            gq.append("v_and_b32 v%d, 0xffff0000, v%d" % (TMP + 2 * (d & 1) + 1, xt + d))
                        for d in range(2):
                            gq.append("v_pk_fma_f32 %s, %s, %s, %s" % (vr(ST2, 2), vr(TMP + 2 * d, 2), vr(TMP + 2 * d, 2), vr(ST2, 2)))
                        groups.append(gq)
                if 'nodot' in EXP: groups = []
                if 'nodma' in EXP: dm = []
                if 'notr' in EXP: rd = rd[:1]
                slots = [[] for _ in range(nt)]
                first = 1 if bar else 0
                nrs = 3 if role else 2
                per = (len(rd) + nrs - 1) // nrs if rd else 0
                for i, l in enumerate(rd):
                    slots[first + i // per].append(l)
                for i, gq in enumerate(groups):
                    slots[(nt - 4 + i) if role else (i if g < 4 else 2 + i)].extend(gq)
                if 'noshare' in EXP: pass
                elif g == 4: slots[0].extend(publish())
                elif g == 9: slots[nt - 1].extend(signal())
                elif g == 29: slots[nt - 1].extend(poll())
                elif g == 33: slots[nt - 1].extend(gather(True))
                if dm:
                    slots[nt - 1].extend(dm)
                for t in range(nt):
                    d = ACC + 16 * t
                    a("v_mfma_f32_32x32x16_bf16 %s, %s, %s, %s" % (vr(d, 16), vr(cur + 4 * t, 4), vr(XF[par], 4), vr(d, 16)))
                    if t == 0 and bar:
                        need = ["W%d" % (st + 1)] + (["X%d" % ((st + 1) >> 1)] if (st & 1) else [])
                        if g == 9: need.append("CSP")
                        vm.wait(need)
                        a("s_barrier")
                    for l in slots[t]:
                        emit(l)
        if role == 0: stamp()
        lab = a.newlabel("gok"); lp = a.newlabel("gpoll")
        if 'noshare' in EXP: a("s_mov_b32 s47, 10")
        a("s_cmp_ge_u32 s47, 10")
        a("s_cbranch_scc1 %s" % lab)
        a.label(lp)
        a("v_mov_b32 v%d, 0" % (TMP + 1))
        a("buffer_load_dword v234, v%d, s[52:55], s56 offen sc1" % (TMP + 1))
        if role == 0: a("buffer_load_dword v189, v%d, s[52:55], s70 offen sc1" % (TMP + 1))
        a("s_waitcnt vmcnt(0)")
        if role == 0: a("v_min_u32 v234, v234, v189")
        a("s_nop 0")
        a("v_readfirstlane_b32 s47, v234")
        a("s_nop 3")
        a("s_cmp_ge_u32 s47, 10")
        a("s_cbranch_scc0 %s" % lp)
        for l in gather(False):
            a(l[0] if isinstance(l, tuple) else l)
        a.label(lab)
        a("s_waitcnt vmcnt(0)")
        vm.q = []
        if role == 0:
            for i in range(0, 10, 2):
                a("v_add_f32 v%d, v%d, v%d" % (190 + i, 190 + i, 191 + i))
            a("v_add_f32 v190, v190, v192")
            a("v_add_f32 v194, v194, v196")
            a("v_add_f32 v190, v190, v198")
            a("v_add_f32 v%d, v190, v194" % ST2)
        for i in range(0, 10, 2):
            a("v_add_f32 v%d, v%d, v%d" % (224 + i, 224 + i, 225 + i))
        a("v_add_f32 v224, v224, v226")
        a("v_add_f32 v228, v228, v230")
        a("v_add_f32 v224, v224, v232")
        a("v_add_f32 v224, v224, v228")
        a("v_add_u32 v9, %d, v235" % CS)
        a("ds_write_b32 v9, v224")
        a("s_lshl_b32 s43, s60, 8")
        a("s_add_u32 s43, s43, %d" % STT)
        a("v_lshlrev_b32 v11, 3, v4")
        a("v_add_u32 v11, s43, v11")
        a("v_lshlrev_b32 v10, 4, v3")
        a("v_add_u32 v10, %d, v10" % (CS + t0 * 128))
        def lnfix(accreg, csreg, n):
            for i in range(0, n, 2):
                a("v_pk_fma_f32 %s, %s, %s, %s" % (vr(accreg + i, 2), vr(NEGM, 2), vr(csreg + i, 2), vr(accreg + i, 2)))
            for i in range(0, n, 2):
                a("v_pk_mul_f32 %s, %s, %s" % (vr(accreg + i, 2), vr(RSTD, 2), vr(accreg + i, 2)))
        def kv_gather():
            a("s_barrier")
            if role == 0: stamp()
            a("s_mul_i32 s46, s42, %d" % (16 * 7680))
            a("s_add_u32 s46, s46, %d" % PART_OFF)
            a("v_lshlrev_b32 v8, 3, v1")
            for jj in range(2):
                a("s_add_u32 s54, s40, %d" % (8 * jj))
                a("s_min_u32 s54, s54, 14")
                a("s_lshl_b32 s55, s54, 9")
                a("s_add_u32 s55, s55, s46")
                for rr in range(16):
                    a("buffer_load_dwordx2 %s, v8, s[32:35], s55 offen sc1" % vr(104 + 64 * jj + 4 * rr + 2, 2))
                    if rr < 15: a("s_add_u32 s55, s55, 7680")
            for jj in range(2):
                B = 104 + 64 * jj
                a("s_add_u32 s54, s40, %d" % (8 * jj))
                a("s_min_u32 s54, s54, 14")
                a("s_mul_i32 s55, s54, 11")
                a("s_lshr_b32 s55, s55, 5")
                a("s_mul_i32 s56, s55, 3")
                a("s_sub_u32 s56, s54, s56")
                a("s_lshl_b32 s55, s55, 4")
                a("s_lshl_b32 s56, s56, 4")
                a("v_and_b32 v39, 15, v1")
                a("v_add_u32 v39, s56, v39")
                a("v_lshrrev_b32 v40, 4, v1")
                a("v_lshlrev_b32 v40, 2, v40")
                a("v_add_u32 v40, s55, v40")
                a("v_cmp_le_u32 vcc, 40, v40")
                a("s_nop 1")
                a("v_cndmask_b32 v41, 0, 1, vcc")
                a("v_mul_u32_u24 v42, 40, v41")
                a("v_sub_u32 v40, v40, v42")
                a("v_mul_u32_u24 v42, 20, v41")
                a("v_sub_u32 v42, v39, v42")
                a("v_cmp_gt_u32 s[50:51], 20, v42")
                a("v_cmp_eq_u32 s[48:49], 40, v39")
                a("s_nop 1")
                a("v_cndmask_b32 v42, v42, 20, s[48:49]")
                a("s_or_b64 s[50:51], s[50:51], s[48:49]")
                a("v_lshrrev_b32 v43, 2, v42")
                a("v_lshlrev_b32 v43, 3, v43")
                a("v_lshl_add_u32 v43, v41, 2, v43")
                a("v_and_b32 v44, 3, v42")
                a("v_add_u32 v43, v43, v44")
                a("v_mul_u32_u24 v43, 160, v43")
                a("v_lshrrev_b32 v44, 3, v40")
                a("v_lshlrev_b32 v44, 4, v44")
                a("v_lshl_add_u32 v44, v41, 3, v44")
                a("v_and_b32 v45, 7, v40")
                a("v_add_u32 v44, v44, v45")
                a("v_lshl_add_u32 v43, v44, 1, v43")
                a("v_add_u32 v43, %d, v43" % IMG)
                a("s_waitcnt vmcnt(%d)" % (16 - 16 * jj))
                for rr in range(16):
                    R = B + 4 * rr
                    a("v_lshlrev_b32 v%d, 16, v%d" % (R, R + 2))
                    a("v_and_b32 v%d, 0xffff0000, v%d" % (R + 1, R + 2))
                    a("v_lshlrev_b32 v%d, 16, v%d" % (R + 2, R + 3))
                    a("v_and_b32 v%d, 0xffff0000, v%d" % (R + 3, R + 3))
                for step in (8, 4, 2, 1):
                    for rr in range(step):
                        for i in (0, 2):
                            a("v_pk_add_f32 %s, %s, %s" % (vr(B + 4 * rr + i, 2), vr(B + 4 * rr + i, 2), vr(B + 4 * (rr + step) + i, 2)))
                a("v_cvt_pk_bf16_f32 v44, v%d, v%d" % (B, B + 1))
                a("v_cvt_pk_bf16_f32 v45, v%d, v%d" % (B + 2, B + 3))
                a("s_and_saveexec_b64 s[48:49], s[50:51]")
                a("ds_write_b64 v43, v[44:45]")
                a("s_mov_b64 exec, s[48:49]")
            a("s_waitcnt lgkmcnt(0)")
            a("s_barrier")
        if role == 0:
            a.nop(6)
            a("v_mov_b32 v5, v%d" % (ACC + 60))
            a("v_mov_b32 v6, v%d" % (ACC + 60))
            a("s_nop 1")
            a("v_permlane32_swap_b32 v5, v6")
            a("s_nop 1")
            a("v_mov_b32 v8, 0x3acccccd")
            a("v_mul_f32 v12, v5, v8")
            a("v_mul_f32 v13, v%d, v8" % ST2)
            a("v_fma_f32 v13, -v12, v12, v13")
            a("v_max_f32 v13, 0, v13")
            a("v_cvt_pk_bf16_f32 v14, v12, v13")
            a("v_lshlrev_b32 v12, 16, v14")
            a("v_and_b32 v13, 0xffff0000, v14")
            a("v_add_f32 v13, 0x3727c5ac, v13")
            a("v_cvt_pk_bf16_f32 v14, v13, v13")
            a("v_and_b32 v13, 0xffff0000, v14")
            a("v_sqrt_f32 v13, v13")
            a("s_nop 0")
            a("v_cvt_pk_bf16_f32 v14, v13, v13")
            a("v_and_b32 v13, 0xffff0000, v14")
            a("v_rcp_f32 v14, v13")
            a("v_sub_f32 v13, 0, v12")
            a("v_mov_b32 v12, v13")
            a("v_mov_b32 v15, v14")
            a("ds_write_b64 v11, v[13:14]" if False else "ds_write_b32 v11, v13")
            a("ds_write_b32 v11, v14 offset:4")
            a("s_waitcnt lgkmcnt(0)")
            a("s_barrier")
            CQ = 160
            for t in range(4):
                for q in range(4):
                    if t == 3 and q == 3: continue
                    a("ds_read_b128 %s, v10 offset:%d" % (vr(CQ + 16 * t + 4 * q, 4), t * 128 + q * 32))
            a("v_mul_u32_u24 v9, 160, v4")
            a("v_lshl_add_u32 v9, v3, 4, v9")
            a("v_add_u32 v9, %d, v9" % IMG)
            a("s_waitcnt lgkmcnt(0)")
            lnfix(ACC, CQ, 60)
            for i in range(30):
                a("v_cvt_pk_bf16_f32 v%d, v%d, v%d" % (16 + i, ACC + 2 * i, ACC + 2 * i + 1))
            for tp in range(3):
                for s in range(5):
                    a("ds_read_b128 %s, v9 offset:%d" % (vr(160 + 4 * (tp * 5 + s), 4), tp * 32 * 160 + s * 32))
            for i in range(48):
                a("v_mov_b32 v%d, 0" % (64 + i))
            a("s_lshl_b32 s43, s60, 5")
            a("v_add_u32 v11, s43, v4")
            a("v_mul_u32_u24 v11, 288, v11")
            a("v_add_u32 v11, %d, v11" % TI)
            a("v_lshl_add_u32 v10, v3, 3, v11")
            a("s_waitcnt lgkmcnt(0)")
            for s in range(5):
                for tp in range(3):
                    a("v_mfma_f32_32x32x16_bf16 %s, %s, %s, %s" % (vr(64 + 16 * tp, 16), vr(160 + 4 * (tp * 5 + s), 4), vr(16 + 4 * s, 4), vr(64 + 16 * tp, 16)))
            for i in range(5):
                a("ds_write_b64 v10, %s offset:%d" % (vr(36 + 2 * i, 2), 160 + 16 * i))
            a("s_mov_b32 s50, 0"); a("s_mov_b32 s51, -1")
            a("s_mov_b32 s52, -1"); a("s_mov_b32 s53, 0")
            a("s_lshl_b32 s43, s41, 4")
            a("s_add_u32 s43, s43, s42")
            a("s_lshl_b32 s43, s43, 2")
            a("s_add_u32 s43, s43, s60")
            a("s_mul_i32 s47, s43, 5120")
            a("s_add_u32 s47, s47, %d" % PHIQ_OFF)
            a("v_mul_u32_u24 v9, 160, v4")
            a("v_mov_b32 v16, 0x%x" % LOG2E)
            a("v_mov_b32 v17, 0x%x" % LOG2E)
            a("v_mov_b32 v20, 0x3f80"); a("v_mov_b32 v21, 0"); a("v_mov_b32 v22, 0"); a("v_mov_b32 v23, 0")
            a("s_mov_b64 exec, s[52:53]")
            a("ds_write_b128 v11, v[20:23] offset:240")
            a("s_mov_b64 exec, -1")
            a.nop(8)
            for i in range(0, 40, 2):
                a("v_cvt_pk_bf16_f32 v%d, v%d, v%d" % (112 + i // 2, 64 + i, 65 + i))
            for i in range(0, 40, 2):
                a("v_lshlrev_b32 v%d, 16, v%d" % (64 + i, 112 + i // 2))
                a("v_and_b32 v%d, 0xffff0000, v%d" % (65 + i, 112 + i // 2))
            for hs in range(2):
                X = 64 + 20 * hs
                mx, mn = 24 + 4 * hs, 26 + 4 * hs
                a("v_max3_f32 v%d, v%d, v%d, v%d" % (mx, X, X + 1, X + 2))
                a("v_min3_f32 v%d, v%d, v%d, v%d" % (mn, X, X + 1, X + 2))
                for i in range(3, 19, 2):
                    a("v_max3_f32 v%d, v%d, v%d, v%d" % (mx, mx, X + i, X + i + 1))
                    a("v_min3_f32 v%d, v%d, v%d, v%d" % (mn, mn, X + i, X + i + 1))
                a("v_max_f32 v%d, v%d, v%d" % (mx, mx, X + 19))
                a("v_min_f32 v%d, v%d, v%d" % (mn, mn, X + 19))
                a("v_mul_f32 v%d, v%d, v16" % (mx, mx))
                a("v_mul_f32 v%d, v%d, v16" % (mn, mn))
                a("v_sub_f32 v%d, 0, v%d" % (mx, mx))
                a("v_mov_b32 v%d, v%d" % (mx + 1, mx))
                a("v_mov_b32 v%d, v%d" % (mn + 1, mn))
            for hs in range(2):
                X = 64 + 20 * hs
                mx, mn = 24 + 4 * hs, 26 + 4 * hs
                for sign in range(2):
                    E = 160 + 40 * hs + 20 * sign
                    for i in range(0, 20, 2):
                        if sign == 0:
                            a("v_pk_fma_f32 %s, %s, v[16:17], %s" % (vr(E + i, 2), vr(X + i, 2), vr(mx, 2)))
                        else:
                            a("v_pk_fma_f32 %s, %s, v[16:17], %s neg_lo:[1,0,0] neg_hi:[1,0,0]" % (vr(E + i, 2), vr(X + i, 2), vr(mn, 2)))
            for i in range(80):
                a("v_exp_f32 v%d, v%d" % (160 + i, 160 + i))
            a("s_nop 0")
            for gi in range(4):
                E = 160 + 20 * gi; S = 32 + 2 * gi
                a("v_pk_add_f32 %s, %s, %s" % (vr(S, 2), vr(E, 2), vr(E + 2, 2)))
                for i in range(4, 20, 2):
                    a("v_pk_add_f32 %s, %s, %s" % (vr(S, 2), vr(S, 2), vr(E + i, 2)))
            for gi in range(4):
                S = 32 + 2 * gi
                a("v_add_f32 v%d, v%d, v%d" % (S, S, S + 1))
            for gi in range(4):
                S = 32 + 2 * gi
                a("v_rcp_f32 v%d, v%d" % (S, S))
            a("s_nop 0")
            for gi in range(4):
                S = 32 + 2 * gi
                a("v_mov_b32 v%d, v%d" % (S + 1, S))
            for gi in range(4):
                E = 160 + 20 * gi; S = 32 + 2 * gi
                for i in range(0, 20, 2):
                    a("v_pk_mul_f32 %s, %s, %s" % (vr(E + i, 2), vr(E + i, 2), vr(S, 2)))
            for i in range(40):
                a("v_cvt_pk_bf16_f32 v%d, v%d, v%d" % (64 + i, 160 + 2 * i, 161 + 2 * i))
            a("s_mov_b64 exec, s[52:53]")
            for i in range(10):
                a("ds_write_b128 v11, %s offset:%d" % (vr(64 + 4 * i, 4), 16 * i))
            a("s_mov_b64 exec, -1")
            a("s_nop 1")
            for i in range(20):
                a("v_permlane32_swap_b32 v%d, v%d" % (64 + i, 84 + i))
            stamp()
            a("v_lshrrev_b32 v5, 4, v1")
            a("v_bfe_u32 v6, v1, 2, 2")
            a("v_lshl_add_u32 v5, v5, 2, v6")
            a("v_mul_u32_u24 v5, 288, v5")
            a("v_and_b32 v6, 3, v1")
            a("v_lshl_add_u32 v5, v6, 3, v5")
            a("v_add_u32 v5, %d, v5" % TI)
            a("s_lshl_b32 s43, s42, 4")
            a("s_add_u32 s43, s43, s41")
            a("s_mul_i32 s47, s43, 7680")
            a("s_add_u32 s47, s47, %d" % PART_OFF)
            a("v_lshlrev_b32 v8, 4, v1")
            def lsync(idx):
                lp = a.newlabel("lsync")
                a("v_mov_b32 v6, %d" % (CNT + 4 * idx))
                a("v_mov_b32 v7, 1")
                a("s_waitcnt lgkmcnt(0)")
                a("s_mov_b64 exec, 1")
                a("ds_add_u32 v6, v7")
                a("s_mov_b64 exec, -1")
                a.label(lp)
                a("ds_read_b32 v7, v6")
                a("s_waitcnt lgkmcnt(0)")
                a("v_readfirstlane_b32 s43, v7")
                a("s_nop 3")
                a("s_cmp_lt_u32 s43, 4")
                a("s_cbranch_scc1 %s" % lp)
            lsync(0)
            for jj in range(4):
                a("s_add_u32 s54, s60, %d" % (4 * jj))
                a("s_min_u32 s54, s54, 14")
                a("s_mul_i32 s55, s54, 11")
                a("s_lshr_b32 s55, s55, 5")
                a("s_mul_i32 s56, s55, 3")
                a("s_sub_u32 s56, s54, s56")
                a("s_lshl_b32 s55, s55, 5")
                a("s_lshl_b32 s56, s56, 5")
                a("s_add_u32 s56, s56, 160")
                a("v_add_u32 v6, s55, v5")
                a("v_add_u32 v7, s56, v5")
                B = 104 + 32 * jj
                for kt in range(4):
                    for rd in range(2):
                        a("ds_read_b64_tr_b16 %s, v6 offset:%d" % (vr(B + 8 * kt + 2 * rd, 2), (32 * kt + 16 * rd) * 288))
                        a("ds_read_b64_tr_b16 %s, v7 offset:%d" % (vr(B + 4 + 8 * kt + 2 * rd, 2), (32 * kt + 16 * rd) * 288))
                a("s_lshl_b32 s54, s54, 9")
                a("s_add_u32 s%d, s54, s47" % (68 + jj))
            for e in range(16):
                a("v_mov_b32 v%d, 0" % (16 + e))
            a("s_waitcnt lgkmcnt(0)")
            for kt in range(4):
                for jj in range(4):
                    B = 104 + 32 * jj
                    a("v_mfma_f32_16x16x32_bf16 %s, %s, %s, %s" % (vr(16 + 4 * jj, 4), vr(B + 8 * kt, 4), vr(B + 4 + 8 * kt, 4), vr(16 + 4 * jj, 4)))
            a.nop(8)
            a("v_lshlrev_b32 v8, 3, v1")
            for jj in range(4):
                a("v_cvt_pk_bf16_f32 v%d, v%d, v%d" % (40 + 2 * jj, 16 + 4 * jj, 17 + 4 * jj))
                a("v_cvt_pk_bf16_f32 v%d, v%d, v%d" % (41 + 2 * jj, 18 + 4 * jj, 19 + 4 * jj))
            for jj in range(4):
                a("buffer_store_dwordx2 %s, v8, s[32:35], s%d offen sc1" % (vr(40 + 2 * jj, 2), 68 + jj))
            a("v_mov_b32 v32, 0"); a("v_mov_b32 v33, 0"); a("v_mov_b32 v34, 0"); a("v_mov_b32 v35, 0")
            a("v_lshlrev_b32 v5, 4, v0")
            a("v_add_u32 v5, %d, v5" % IMG)
            a("ds_write_b128 v5, v[32:35]")
            a("ds_write_b128 v5, v[32:35] offset:4096")
            a("ds_write_b128 v5, v[32:35] offset:8192")
            stamp()
            a("s_waitcnt vmcnt(0)")
            stamp()
            lsync(1)
            a("s_mov_b32 s52, s58")
            a("s_and_b32 s53, s59, 0xffff")
            a("s_mov_b32 s54, 256")
            a("s_mov_b32 s55, 0x00020000")
            a("s_lshl_b32 s56, s42, 2")
            a("s_add_u32 s56, s56, 64")
            a("v_mov_b32 v6, 1")
            a("v_mov_b32 v7, 0")
            lsk = a.newlabel("nopoll")
            a("s_cmp_lg_u32 s40, 0")
            a("s_cbranch_scc1 %s" % lsk)
            stamp()
            if STAMP: a("s_memrealtime s[100:101]")
            a("s_mov_b64 exec, 1")
            a("buffer_atomic_add v6, v7, s[52:55], s56 offen sc0 sc1")
            a("s_lshl_b32 s46, s42, 12")
            a("s_add_u32 s46, s46, %d" % FLG_OFF)
            a("s_lshl_b32 s44, s41, 8")
            a("s_add_u32 s44, s44, s46")
            a("s_waitcnt vmcnt(0)")
            a("v_readfirstlane_b32 s43, v6")
            a("s_nop 3")
            a("s_and_b32 s43, s43, 15")
            l2 = a.newlabel("notlast")
            a("s_cmp_lg_u32 s43, 15")
            a("s_cbranch_scc1 %s" % l2)
            a("s_mov_b64 exec, 0xffff")
            a("v_lshlrev_b32 v6, 8, v1")
            a("v_mov_b32 v9, 1")
            a("buffer_store_dword v9, v6, s[32:35], s46 offen sc1")
            a("s_mov_b64 exec, 1")
            a.label(l2)
            lp = a.newlabel("kpoll")
            a.label(lp)
            a("s_sleep 2")
            a("buffer_load_dword v6, v7, s[32:35], s44 offen sc1")
            a("s_waitcnt vmcnt(0)")
            a("v_readfirstlane_b32 s43, v6")
            a("s_nop 3")
            a("s_cmp_lg_u32 s43, 1")
            a("s_cbranch_scc1 %s" % lp)
            a("s_mov_b64 exec, -1")
            stamp()
            a.label(lsk)
            kv_gather()
            a("v_mul_u32_u24 v9, 160, v4")
            a("v_lshl_add_u32 v9, v3, 4, v9")
            a("v_add_u32 v9, %d, v9" % IMG)
            for u in range(2):
                for s_ in range(5):
                    a("ds_read_b128 %s, v9 offset:%d" % (vr(160 + 4 * (u * 5 + s_), 4), u * 32 * 160 + s_ * 32))
            for i in range(32):
                a("v_mov_b32 v%d, 0" % (128 + i))
            a("s_lshl_b32 s43, s41, 1")
            a("s_lshr_b32 s47, s60, 1")
            a("s_add_u32 s43, s43, s47")
            a("s_mul_i32 s43, s43, %d" % (68 * 4096))
            a("s_and_b32 s47, s60, 1")
            a("s_lshl_b32 s47, s47, 11")
            a("s_add_u32 s47, s47, s43")
            a("s_mul_i32 s43, s42, 40")
            a("v_mul_u32_u24 v9, 20, v3")
            a("v_add_u32 v9, s43, v9")
            a("v_lshlrev_b32 v10, 6, v4")
            for m in range(5):
                a("v_add_u32 v11, %d, v9" % (4 * m))
                a("v_lshrrev_b32 v12, 5, v11")
                a("v_lshlrev_b32 v12, 12, v12")
                a("v_and_b32 v11, 31, v11")
                a("v_lshl_add_u32 v12, v11, 1, v12")
                a("v_add_u32 v%d, v12, v10" % (40 + m))
            a("s_waitcnt lgkmcnt(0)")
            for s_ in range(5):
                for u in range(2):
                    a("v_mfma_f32_32x32x16_bf16 %s, %s, %s, %s" % (vr(128 + 16 * u, 16), vr(160 + 4 * (u * 5 + s_), 4), vr(84 + 4 * s_, 4), vr(128 + 16 * u, 16)))
            a.nop(12)
            for i in range(0, 20, 2):
                a("v_cvt_pk_bf16_f32 v%d, v%d, v%d" % (48 + i // 2, 128 + i, 129 + i))
            a("v_cvt_pk_bf16_f32 v58, v148, v148")
            a("v_and_b32 v58, 0xffff0000, v58")
            a("v_add_f32 v58, 0x358637bd, v58")
            a("v_cvt_pk_bf16_f32 v58, v58, v58")
            a("v_and_b32 v58, 0xffff0000, v58")
            a("v_rcp_f32 v58, v58")
            for i in range(0, 20, 2):
                a("v_lshlrev_b32 v%d, 16, v%d" % (128 + i, 48 + i // 2))
                a("v_and_b32 v%d, 0xffff0000, v%d" % (129 + i, 48 + i // 2))
            a("v_mov_b32 v59, v58")
            for i in range(0, 20, 2):
                a("v_pk_mul_f32 %s, %s, v[58:59]" % (vr(128 + i, 2), vr(128 + i, 2)))
            for i in range(0, 20, 2):
                a("v_cvt_pk_bf16_f32 v%d, v%d, v%d" % (48 + i // 2, 128 + i, 129 + i))
            for m in range(5):
                a("buffer_store_dwordx2 %s, v%d, s[32:35], s47 offen" % (vr(48 + 2 * m, 2), 40 + m))
            if STAMP:
                a("s_waitcnt vmcnt(0)")
                stamp()
                a("s_waitcnt lgkmcnt(0)")
                a("s_cmp_lg_u32 s40, 0")
                a("s_cbranch_scc1 L_k1_end")
                a("v_mov_b32 v2, s98")
                a("v_mov_b32 v3, s100")
                a("s_lshl_b32 s43, s2, 3")
                a("s_add_u32 s43, s43, %d" % (30 * 1024 * 1024))
                a("v_mov_b32 v5, 0")
                a("buffer_store_dwordx2 v[2:3], v5, s[32:35], s43 offen")
                a("s_cmp_lg_u32 s2, 0")
                a("s_cbranch_scc1 L_k1_end")
                srd(a, 16, 58, 256)
                a("v_mov_b32 v2, 0")
                for i in range(nst[0]):
                    a("s_sub_u32 s43, s%d, s78" % (78 + 2 * i))
                    a("v_mov_b32 v3, s43")
                    a("buffer_store_dword v3, v2, s[16:19], 0 offen offset:%d" % (4 * i))
            a("s_endpgm")
        else:
            a("s_waitcnt lgkmcnt(0)")
            a("s_barrier")
            a("ds_read_b32 v12, v11")
            a("ds_read_b32 v14, v11 offset:4")
            def cq(t, q):
                i = 16 * t + 4 * q
                return 160 + i if i < 64 else 16 + (i - 64)
            for t in range(6):
                for q in range(4):
                    a("ds_read_b128 %s, v10 offset:%d" % (vr(cq(t, q), 4), t * 128 + q * 32))
            a("s_lshl_b32 s43, s41, 1")
            a("s_lshr_b32 s47, s60, 1")
            a("s_add_u32 s43, s43, s47")
            a("s_mul_i32 s43, s43, 68")
            a("s_mul_i32 s47, s42, 3")
            a("s_add_u32 s43, s43, s47")
            a("s_add_u32 s43, s43, 20")
            a("s_lshl_b32 s43, s43, 12")
            a("s_and_b32 s47, s60, 1")
            a("s_lshl_b32 s47, s47, 11")
            a("s_add_u32 s47, s47, s43")
            a("v_lshlrev_b32 v5, 6, v4")
            a("v_lshl_add_u32 v5, v3, 3, v5")
            a("v_mov_b32 v48, 0xc0135761"); a("v_mov_b32 v49, 0xc0135761")
            a("v_mov_b32 v50, 0x3d372713"); a("v_mov_b32 v51, 0x3d372713")
            a("v_mov_b32 v52, 1.0"); a("v_mov_b32 v53, 1.0")
            a("s_waitcnt lgkmcnt(0)")
            a("v_mov_b32 v13, v12")
            a("v_mov_b32 v15, v14")
            for t in range(6):
                lnfix(ACC + 16 * t, cq(t, 0), 16)
            for i in range(0, 96, 2):
                a("v_cvt_pk_bf16_f32 v%d, v%d, v%d" % (160 + i // 2, ACC + i, ACC + i + 1))
            for i in range(0, 96, 2):
                a("v_lshlrev_b32 v%d, 16, v%d" % (ACC + i, 160 + i // 2))
                a("v_and_b32 v%d, 0xffff0000, v%d" % (ACC + i + 1, 160 + i // 2))
            for i in range(3):
                G = ACC + 32 * i; T = 160 + 16 * i
                for e in range(0, 16, 2):
                    a("v_pk_mul_f32 %s, %s, %s" % (vr(T + e, 2), vr(G + e, 2), vr(G + e, 2)))
                for e in range(0, 16, 2):
                    a("v_pk_fma_f32 %s, %s, v[50:51], v[52:53]" % (vr(T + e, 2), vr(T + e, 2)))
                for e in range(0, 16, 2):
                    a("v_pk_mul_f32 %s, %s, %s" % (vr(T + e, 2), vr(T + e, 2), vr(G + e, 2)))
                for e in range(0, 16, 2):
                    a("v_pk_mul_f32 %s, %s, v[48:49]" % (vr(T + e, 2), vr(T + e, 2)))
            for i in range(48):
                a("v_exp_f32 v%d, v%d" % (160 + i, 160 + i))
            a("s_nop 0")
            for e in range(0, 48, 2):
                a("v_pk_add_f32 %s, %s, v[52:53]" % (vr(160 + e, 2), vr(160 + e, 2)))
            for i in range(48):
                a("v_rcp_f32 v%d, v%d" % (160 + i, 160 + i))
            a("s_nop 0")
            for i in range(3):
                G = ACC + 32 * i; T = 160 + 16 * i
                for e in range(0, 16, 2):
                    a("v_pk_mul_f32 %s, %s, %s" % (vr(T + e, 2), vr(T + e, 2), vr(G + e, 2)))
            for e in range(0, 48, 2):
                a("v_cvt_pk_bf16_f32 v%d, v%d, v%d" % (16 + e // 2, 160 + e, 161 + e))
            for e in range(0, 48, 2):
                a("v_lshlrev_b32 v%d, 16, v%d" % (160 + e, 16 + e // 2))
                a("v_and_b32 v%d, 0xffff0000, v%d" % (161 + e, 16 + e // 2))
            for i in range(3):
                U = ACC + 32 * i + 16; T = 160 + 16 * i
                for e in range(0, 16, 2):
                    a("v_pk_mul_f32 %s, %s, %s" % (vr(T + e, 2), vr(T + e, 2), vr(U + e, 2)))
            for e in range(0, 48, 2):
                a("v_cvt_pk_bf16_f32 v%d, v%d, v%d" % (16 + e // 2, 160 + e, 161 + e))
            for i in range(3):
                for q in range(4):
                    a("buffer_store_dwordx2 %s, v5, s[32:35], s47 offen offset:%d" % (vr(16 + 8 * i + 2 * q, 2), q * 16))
                a("s_add_u32 s47, s47, 4096")
            a("s_load_dwordx2 s[4:5], s[0:1], 24")
            a("s_load_dwordx2 s[6:7], s[0:1], 56")
            a("v_subrev_u32 v7, 256, v0")
            for rnd in range(2):
                a("v_add_u32 v9, %d, v7" % (256 * rnd))
                a("v_min_u32 v9, 319, v9")
                a("v_mul_u32_u24 v10, 6554, v9")
                a("v_lshrrev_b32 v10, 16, v10")
                a("v_mul_u32_u24 v11, 10, v10")
                a("v_sub_u32 v11, v9, v11")
                a("v_bfe_u32 v12, v10, 2, 2")
                a("v_lshlrev_b32 v12, 3, v12")
                a("v_lshrrev_b32 v13, 4, v10")
                a("v_lshlrev_b32 v13, 2, v13")
                a("v_and_b32 v14, 3, v10")
                a("v_add3_u32 v12, v12, v13, v14")
                a("v_mul_u32_u24 v12, 1280, v12")
                a("v_lshl_add_u32 v%d, v11, 4, v12" % (60 + rnd))
                a("v_lshlrev_b32 v%d, 4, v9" % (62 + rnd))
            a("s_waitcnt lgkmcnt(0)")
            a("s_mov_b32 s23, 0x00020000")
            for j in range(3):
                a("s_add_u32 s43, s2, %d" % (256 * j))
                a("s_min_u32 s43, s43, 543")
                a("s_lshr_b32 s44, s43, 3")
                a("s_and_b32 s46, s43, 7")
                a("s_cmp_lt_u32 s44, 20")
                a("s_cselect_b32 s20, s4, s6")
                a("s_cselect_b32 s21, s5, s7")
                a("s_cselect_b32 s47, 0, 20")
                a("s_and_b32 s21, s21, 0xffff")
                a("s_mov_b32 s22, %d" % (1536 * 1280))
                a("s_sub_u32 s47, s44, s47")
                a("s_mul_i32 s47, s47, %d" % (32 * 1280))
                a("s_mul_i32 s43, s46, 160")
                a("s_add_u32 s47, s47, s43")
                for rnd in range(2):
                    a("buffer_load_dwordx4 %s, v%d, s[20:23], s47 offen" % (vr(64 + 8 * j + 4 * rnd, 4), 60 + rnd))
                a("s_mul_i32 s43, s46, 68")
                a("s_add_u32 s43, s43, s44")
                a("s_mul_i32 s43, s43, 5120")
                a("s_add_u32 s%d, s43, %d" % (68 + j, WT_OFF))
            for j in range(3):
                a("s_waitcnt vmcnt(%d)" % (4 - 2 * j + 2 * j if False else 4))
                for rnd in range(2):
                    a("buffer_store_dwordx4 %s, v%d, s[32:35], s%d offen" % (vr(64 + 8 * j + 4 * rnd, 4), 62 + rnd, 68 + j))
            kv_gather()
    a.label("L_k1_end")
    a("s_endpgm")
    return dict(name=name, vgpr=256, sgpr=102, grid=256, block=512, lds=LDS, accum=256)
```

```python
from asmlib import *
from layout import *

import os
EXP = os.environ.get('K2EXP', '') + ',wt'
def gen_k2(a):
    nst = [0]
    def stamp():
        if 'stamp' not in EXP: return
        a("s_memtime s[%d:%d]" % (60 + 2 * nst[0], 61 + 2 * nst[0]))
        nst[0] += 1
    name = "k2_kernel"
    kernel_begin(a, name)
    NS = int(os.environ.get('K2NS', '4'))
    STG = 9216
    WREG = max(NS * STG, 21504)
    NK = 17
    a("s_cmp_ge_u32 s2, %s" % os.environ.get('K2WG', '256'))
    a("s_cbranch_scc1 L_k2_end")
    if 'empty' in EXP: a("s_branch L_k2_end")
    stamp()
    a("s_load_dwordx2 s[58:59], s[0:1], 72")
    a("s_load_dwordx2 s[4:5], s[0:1], 0")
    a("s_load_dwordx2 s[6:7], s[0:1], 24")
    a("s_load_dwordx2 s[8:9], s[0:1], 56")
    a("s_load_dwordx2 s[10:11], s[0:1], 64")
    a("s_load_dwordx2 s[12:13], s[0:1], 80")
    a("v_lshrrev_b32 v1, 6, v0")
    a("v_and_b32 v2, 63, v0")
    a("s_nop 0")
    a("v_readfirstlane_b32 s32, v1")
    a("s_and_b32 s33, s2, 7")
    a("s_lshr_b32 s39, s2, 6")
    a("s_lshl_b32 s39, s39, 3")
    a("s_add_u32 s33, s33, s39")
    a("s_lshr_b32 s34, s2, 3")
    a("s_and_b32 s34, s34, 7")
    if 'map2' in EXP:
        a("s_and_b32 s33, s2, 3")
        a("s_lshl_b32 s33, s33, 3")
        a("s_bfe_u32 s39, s2, 0x30003")
        a("s_add_u32 s33, s33, s39")
        a("s_bfe_u32 s34, s2, 0x10002")
        a("s_lshl_b32 s34, s34, 2")
        a("s_lshr_b32 s39, s2, 6")
        a("s_add_u32 s34, s34, s39")
    if 'map3' in EXP:
        a("s_and_b32 s34, s2, 7")
        a("s_lshr_b32 s33, s2, 3")
    a("s_mul_i32 s38, s32, %d" % WREG)
    a("v_lshrrev_b32 v3, 4, v2")
    a("v_and_b32 v8, 1, v3")
    a("v_lshlrev_b32 v8, 1, v8")
    a("v_lshrrev_b32 v9, 1, v3")
    a("v_mul_u32_u24 v9, 3, v9")
    a("v_xor_b32 v8, v8, v9")
    a("v_and_b32 v9, 3, v2")
    a("v_xor_b32 v9, v9, v8")
    a("v_lshlrev_b32 v9, 4, v9")
    a("v_lshrrev_b32 v10, 2, v2")
    a("v_lshlrev_b32 v10, 6, v10")
    a("v_add_u32 v4, v10, v9")
    for i in range(1, 4):
        a("v_add_u32 v%d, %d, v4" % (4 + i, 1024 * i))
    for i in range(5):
        a("v_add_u32 v9, %d, v2" % (64 * i))
        a("v_mul_u32_u24 v10, 6554, v9")
        a("v_lshrrev_b32 v10, 16, v10")
        a("v_mul_u32_u24 v11, 10, v10")
        a("v_sub_u32 v11, v9, v11")
        a("v_bfe_u32 v17, v10, 2, 2")
        a("v_lshlrev_b32 v17, 3, v17")
        a("v_lshrrev_b32 v18, 4, v10")
        a("v_lshlrev_b32 v18, 2, v18")
        a("v_and_b32 v19, 3, v10")
        a("v_add3_u32 v17, v17, v18, v19")
        a("v_mul_u32_u24 v17, 1280, v17")
        a("v_lshl_add_u32 v%d, v11, 4, v17" % (12 + i))
    a("s_waitcnt lgkmcnt(0)")
    a("s_mul_i32 s39, s34, 160")
    for i in range(5):
        a("v_add_u32 v%d, s39, v%d" % (12 + i, 12 + i))
    if 'wt' in EXP:
        for i in range(5):
            a("v_lshlrev_b32 v%d, 4, v2" % (12 + i))
            a("v_add_u32 v%d, %d, v%d" % (12 + i, i * 1024, 12 + i))
    srd(a, 16, 12, AH_BYTES)
    srd(a, 24, 4, 2048 * 1280)
    srd(a, 28, 10, 2048 * 1280)
    a("s_mov_b32 s23, 0x00020000")
    a("s_mov_b32 s41, %d" % (640 * 1280))
    a("s_mov_b32 s42, %d" % (1536 * 1280))
    a("v_bfe_u32 v9, v2, 2, 2")
    a("v_and_b32 v10, 1, v9")
    a("v_lshlrev_b32 v10, 1, v10")
    a("v_lshrrev_b32 v11, 1, v9")
    a("v_mul_u32_u24 v11, 3, v11")
    a("v_xor_b32 v10, v10, v11")
    a("v_xor_b32 v10, v10, v3")
    a("v_and_b32 v11, 15, v2")
    a("v_lshlrev_b32 v11, 6, v11")
    a("v_lshl_add_u32 v20, v10, 4, v11")
    a("v_add_u32 v20, s38, v20")
    a("v_lshlrev_b32 v10, 2, v3")
    a("v_add_u32 v10, v10, v9")
    a("v_mul_u32_u24 v10, 160, v10")
    a("v_and_b32 v11, 3, v2")
    a("v_lshl_add_u32 v21, v11, 3, v10")
    a("v_add_u32 v21, s38, v21")
    a("v_add_u32 v21, 4096, v21")
    a("s_mul_i32 s37, s32, %d" % (NK * 32))
    a("s_mul_i32 s35, s33, %d" % (68 * 4096))
    a("s_lshl_b32 s39, s37, 7")
    a("s_add_u32 s35, s35, s39")
    ACC = 32
    FR = [112, 148]
    for i in range(80):
        a("v_mov_b32 v%d, 0" % (ACC + i))

    def dma_stage(st):
        slot = st % NS
        out = []
        out.append("s_cmp_lt_u32 s37, 640")
        out.append("s_cselect_b32 s20, s6, s8")
        out.append("s_cselect_b32 s21, s7, s9")
        out.append("s_cselect_b32 s22, s41, s42")
        out.append("s_cselect_b32 s36, 0, 640")
        out.append("s_and_b32 s21, s21, 0xffff")
        out.append("s_sub_u32 s36, s37, s36")
        out.append("s_mul_i32 s36, s36, 1280")
        for i in range(4):
            out.append("s_add_u32 m0, s38, %d" % (slot * STG + i * 1024))
            out.append("s_nop 0")
            out.append("buffer_load_dwordx4 v%d, s[16:19], s35 offen lds" % (4 + i))
        if 'wt' in EXP:
            out.append("s_mov_b32 s20, s16")
            out.append("s_mov_b32 s21, s17")
            out.append("s_mov_b32 s22, 0x2000000")
            out.append("s_mul_i32 s36, s34, %d" % (68 * 5120))
            out.append("s_mul_i32 s43, s37, 160")
            out.append("s_add_u32 s36, s36, s43")
            out.append("s_add_u32 s36, s36, %d" % WT_OFF)
        for i in range(5):
            out.append("s_add_u32 m0, s38, %d" % (slot * STG + 4096 + i * 1024))
            out.append("s_nop 0")
            out.append("buffer_load_dwordx4 v%d, s[20:23], s36 offen lds" % (12 + i))
        if 'nodma' in EXP: out = [l for l in out if 'buffer_load' not in l]
        out.append("s_add_u32 s35, s35, 4096")
        out.append("s_add_u32 s37, s37, 32")
        return out

    def frag_reads(st):
        slot = st % NS
        fs = FR[st & 1]
        out = []
        for t in range(5):
            for rd in range(2):
                out.append("ds_read_b64_tr_b16 %s, v21 offset:%d" % (vr(fs + 4 * t + 2 * rd, 2), slot * STG + t * 32 + rd * 2560))
        for i in range(4):
            out.append("ds_read_b128 %s, v20 offset:%d" % (vr(fs + 20 + 4 * i, 4), slot * STG + i * 1024))
        return out

    def mfmas(st):
        fs = FR[st & 1]
        out = []
        for tt in range(4):
            for ct in range(5):
                d = ACC + (tt * 5 + ct) * 4
                out.append("v_mfma_f32_16x16x32_bf16 %s, %s, %s, %s" % (vr(d, 4), vr(fs + 4 * ct, 4), vr(fs + 20 + 4 * tt, 4), vr(d, 4)))
        return out

    stamp()
    for st in range(NS - 1):
        for l in dma_stage(st): a(l)
    stamp()
    a("s_waitcnt vmcnt(%d)" % (9 * (NS - 2)))
    stamp()
    for l in frag_reads(0): a(l)
    for l in dma_stage(NS - 1): a(l)
    issued = NS
    for i in range(NK):
        if i + 1 < NK:
            outstanding_after = (issued - (i + 2)) * 9
            a("s_waitcnt vmcnt(%d)" % outstanding_after)
            for l in frag_reads(i + 1): a(l)
            a("s_waitcnt lgkmcnt(14)")
        else:
            a("s_waitcnt lgkmcnt(0)")
        m = mfmas(i)
        if 'nomfma' in EXP: m = m[:1]
        d = dma_stage(i + NS) if i + NS < NK else []
        if d: issued += 1
        di = 0
        for j, l in enumerate(m):
            a(l)
            take = 2
            while take > 0 and di < len(d):
                a(d[di]); di += 1; take -= 1
        while di < len(d):
            a(d[di]); di += 1
    stamp()
    a.nop(10)
    a("v_and_b32 v9, 15, v2")
    a("v_mul_u32_u24 v9, 336, v9")
    a("v_lshl_add_u32 v9, v3, 4, v9")
    a("v_add_u32 v9, s38, v9")
    for tt in range(4):
        for ct in range(5):
            d = ACC + (tt * 5 + ct) * 4
            a("ds_write_b128 v9, %s offset:%d" % (vr(d, 4), tt * 16 * 336 + ct * 64))
    a("s_waitcnt lgkmcnt(0)")
    a("s_barrier")
    stamp()
    a("s_mul_i32 s39, s33, %d" % (64 * 1280))
    a("s_mul_i32 s40, s34, 160")
    a("s_add_u32 s39, s39, s40")
    for it in range(5):
        b = 32 + it * 24
        a("v_add_u32 v9, %d, v0" % (256 * it))
        a("v_mul_u32_u24 v10, 3277, v9")
        a("v_lshrrev_b32 v10, 16, v10")
        a("v_mul_u32_u24 v11, 20, v10")
        a("v_sub_u32 v11, v9, v11")
        a("v_mul_u32_u24 v9, 336, v10")
        a("v_lshl_add_u32 v9, v11, 4, v9")
        a("v_mul_u32_u24 v10, 1280, v10")
        a("v_lshl_add_u32 v%d, v11, 3, v10" % (b + 18))
        a("buffer_load_dwordx2 %s, v%d, s[24:27], s39 offen" % (vr(b + 16, 2), b + 18))
        a("v_add_u32 v10, %d, v9" % (2 * WREG))
        for w in range(4):
            a("ds_read_b128 %s, v%d offset:%d" % (vr(b + 4 * w, 4), 9 if w < 2 else 10, (w & 1) * WREG))
    for it in range(5):
        b = 32 + it * 24
        a("s_waitcnt vmcnt(%d) lgkmcnt(%d)" % (4 - it, min(15, (4 - it) * 4)))
        for j in range(4):
            a("v_add_f32 v%d, v%d, v%d" % (b + j, b + j, b + 4 + j))
            a("v_add_f32 v%d, v%d, v%d" % (b + 8 + j, b + 8 + j, b + 12 + j))
        a("v_lshlrev_b32 v%d, 16, v%d" % (b + 4, b + 16))
        a("v_and_b32 v%d, 0xffff0000, v%d" % (b + 5, b + 16))
        a("v_lshlrev_b32 v%d, 16, v%d" % (b + 6, b + 17))
        a("v_and_b32 v%d, 0xffff0000, v%d" % (b + 7, b + 17))
        for j in range(4):
            a("v_add_f32 v%d, v%d, v%d" % (b + j, b + j, b + 8 + j))
        for j in range(4):
            a("v_add_f32 v%d, v%d, v%d" % (b + j, b + j, b + 4 + j))
        a("v_cvt_pk_bf16_f32 v%d, v%d, v%d" % (b + 20, b, b + 1))
        a("v_cvt_pk_bf16_f32 v%d, v%d, v%d" % (b + 21, b + 2, b + 3))
        a("buffer_store_dwordx2 %s, v%d, s[28:31], s39 offen" % (vr(b + 20, 2), b + 18))
    if 'stamp' in EXP:
        a("s_waitcnt vmcnt(0)")
        stamp()
        a("s_waitcnt lgkmcnt(0)")
        a("s_cmp_lg_u32 s2, 0")
        a("s_cbranch_scc1 L_k2_end")
        a("s_cmp_lg_u32 s32, 0")
        a("s_cbranch_scc1 L_k2_end")
        srd(a, 16, 58, 256)
        a("v_mov_b32 v2, 0")
        for i in range(nst[0]):
            a("s_sub_u32 s43, s%d, s60" % (60 + 2 * i))
            a("v_mov_b32 v3, s43")
            a("buffer_store_dword v3, v2, s[16:19], 0 offen offset:%d" % (4 * i))
    a.label("L_k2_end")
    a("s_endpgm")
    return dict(name=name, vgpr=184, sgpr=96, grid=256, block=256, lds=4 * WREG)
```

```python
from asmlib import *
from layout import *
import os
EXP = os.environ.get('K1EXP', '')

class Vm:
    def __init__(self, a):
        self.a = a; self.q = []
    def issue(self, tag):
        self.q.append(tag)
    def wait(self, tags, extra=""):
        if isinstance(tags, str): tags = [tags]
        idxs = [i for i, t in enumerate(self.q) if t in tags]
        if not idxs:
            if extra: self.a("s_waitcnt" + extra)
            return
        idx = max(idxs)
        n = len(self.q) - 1 - idx
        self.a("s_waitcnt vmcnt(%d)%s" % (min(n, 63), extra))
        self.q = self.q[idx + 1:] if n <= 63 else self.q[len(self.q) - 63:]

LOG2E = 0x3fb8aa3b
STAMP = 'stamp' in EXP
def gen_k1(a):
    nst = [0]
    def stamp():
        if not STAMP: return
        a("s_memtime s[%d:%d]" % (78 + 2 * nst[0], 79 + 2 * nst[0]))
        nst[0] += 1
    name = "k1_kernel"
    kernel_begin(a, name)
    WSL = 20480; XS = 4 * WSL
    IMG = XS + 3 * 16384
    CS = IMG + 15360
    STT = CS + 1536
    CNT = STT + 1024
    LDS = CNT + 64
    TI = 0
    ACC = 64
    NEGM, RSTD = 12, 14
    TRB0, TRB1, VWA, VWF, VX0, VX1, XR0, ST2, CSV, TMP = 236, 237, 238, 239, 240, 241, 242, 246, 248, 252
    a("s_cmp_ge_u32 s2, 256")
    a("s_cbranch_scc1 L_k1_end")
    stamp()
    if STAMP: a("s_memrealtime s[98:99]")
    a("s_load_dwordx4 s[4:7], s[0:1], 0")
    a("s_load_dwordx2 s[10:11], s[0:1], 40")
    a("s_load_dwordx2 s[12:13], s[0:1], 48")
    a("s_load_dwordx2 s[8:9], s[0:1], 16")
    a("s_load_dwordx2 s[14:15], s[0:1], 80")
    a("s_load_dwordx2 s[58:59], s[0:1], 72")
    a("v_lshrrev_b32 v2, 6, v0")
    a("v_and_b32 v1, 63, v0")
    a("s_nop 0")
    a("v_readfirstlane_b32 s40, v2")
    a("s_and_b32 s42, s2, 7")
    a("s_lshr_b32 s43, s2, 7")
    a("s_lshl_b32 s43, s43, 3")
    a("s_or_b32 s42, s42, s43")
    a("s_bfe_u32 s41, s2, 0x40003")
    a("s_and_b32 s60, s40, 3")
    a("s_lshr_b32 s61, s40, 2")
    a("v_lshrrev_b32 v3, 5, v1")
    a("v_and_b32 v4, 31, v1")
    a("v_lshrrev_b32 v5, 4, v1")
    a("v_bfe_u32 v6, v1, 2, 2")
    a("v_xor_b32 v6, v6, v5")
    a("v_and_b32 v7, 3, v1")
    a("v_lshl_add_u32 v7, v6, 2, v7")
    a("v_min_u32 v7, 14, v7")
    a("v_mul_u32_u24 v8, 13, v7")
    a("v_lshrrev_b32 v8, 6, v8")
    a("v_mul_u32_u24 v9, 5, v8")
    a("v_sub_u32 v9, v7, v9")
    a("v_lshrrev_b32 v10, 1, v8")
    a("v_sub_u32 v10, 1, v10")
    a("v_xor_b32 v8, v8, v10")
    a("v_mul_u32_u24 v8, 1280, v8")
    a("v_lshl_add_u32 v8, v9, 4, v8")
    a("v_mul_u32_u24 v9, 3840, v5")
    a("s_mul_i32 s43, s42, 80")
    a("v_add3_u32 v%d, v8, v9, s43" % VWA)
    a("v_lshrrev_b32 v5, 3, v1")
    a("v_and_b32 v6, 7, v1")
    a("v_lshrrev_b32 v7, 1, v5")
    a("v_xor_b32 v8, v6, v7")
    a("v_mul_u32_u24 v9, 1280, v5")
    a("v_lshl_add_u32 v%d, v8, 4, v9" % VX0)
    a("v_xor_b32 v8, 4, v8")
    a("v_lshl_add_u32 v%d, v8, 4, v9" % VX1)
    a("v_add_u32 v%d, %d, v%d" % (VX1, 8 * 1280, VX1))
    a("s_lshl_b32 s45, s41, 7")
    a("s_lshl_b32 s43, s40, 4")
    a("s_add_u32 s45, s45, s43")
    a("s_mul_i32 s45, s45, 1280")
    a("s_lshl_b32 s57, s40, 11")
    a("s_add_u32 s57, s57, %d" % XS)
    a("s_lshl_b32 s46, s60, 11")
    a("s_mov_b32 s48, 0xf7ff7fff")
    a("s_mov_b32 s49, 0xfff7ff7f")
    a("s_mul_i32 s71, s60, %d" % (8 * 3840))
    a("s_lshl_b32 s43, s60, 1")
    a("s_add_u32 s43, s43, 4")
    a("s_cmp_eq_u32 s61, 0")
    a("s_cselect_b32 s62, s60, s43")
    a("s_add_u32 s43, s41, s42")
    a("s_mul_i32 s44, s43, 26")
    a("s_lshr_b32 s44, s44, 8")
    a("s_mul_i32 s44, s44, 10")
    a("s_sub_u32 s43, s43, s44")
    a("s_mul_i32 s66, s43, %d" % (64 * 3840))
    a("s_mul_i32 s67, s43, %d" % (64 * 3072))
    a("s_lshl_b32 s65, s43, 7")
    a("s_waitcnt lgkmcnt(0)")
    srd(a, 16, 4, 2048 * 1280)
    srd(a, 20, 6, 640 * 3840)
    for n in range(2):
        S = 24 + 4 * n
        a("s_add_u32 s43, s62, %d" % n)
        a("s_cmp_ge_u32 s43, 6")
        a("s_cselect_b32 s%d, s12, s10" % S)
        a("s_cselect_b32 s%d, s13, s11" % (S + 1))
        a("s_cselect_b32 s44, 6, 0")
        a("s_and_b32 s%d, s%d, 0xffff" % (S + 1, S + 1))
        a("s_mov_b32 s%d, %d" % (S + 2, 640 * 3072))
        a("s_mov_b32 s%d, 0x00020000" % (S + 3))
        a("s_sub_u32 s44, s43, s44")
        a("s_lshl_b32 s%d, s43, 10" % (75 + n))
        a("s_add_u32 s%d, s%d, 32768" % (75 + n, 75 + n))
        a("s_lshl_b32 s44, s44, 6")
        a("v_add_u32 v5, s44, v1")
        a("v_mul_u32_u24 v6, 5462, v5")
        a("v_lshrrev_b32 v6, 16, v6")
        a("v_mul_u32_u24 v7, 12, v6")
        a("v_sub_u32 v7, v5, v7")
        a("v_mul_u32_u24 v6, 3072, v6")
        a("v_lshl_add_u32 v6, v7, 4, v6")
        a("s_mul_i32 s43, s42, 192")
        a("v_add_u32 v%d, s43, v6" % (VWF if n == 0 else 187))

    def dma_w(role, st):
        out = []; tag = "W%d" % st; slot = st % 4
        if role == 0:
            out.append("s_add_u32 s44, s66, s71")
            out.append("s_mov_b64 exec, s[48:49]")
            for j in range(2):
                out.append("s_add_u32 m0, s46, %d" % (slot * 8192 + j * 1024))
                out.append("s_nop 0" if j == 0 else "s_add_u32 s44, s44, %d" % (4 * 3840))
                out.append(("buffer_load_dwordx4 v%d, s[20:23], s44 offen lds" % VWA, tag))
            out.append("s_mov_b64 exec, -1")
            out.append("s_add_u32 s66, s66, %d" % (32 * 3840))
            out.append("s_cmp_ge_u32 s66, %d" % (640 * 3840))
            out.append("s_cselect_b32 s66, 0, s66")
        for n in range(1 if role == 0 else 2):
            out.append("s_add_u32 m0, s%d, %d" % (75 + n, slot * 12288))
            out.append("s_nop 0")
            out.append(("buffer_load_dwordx4 v%d, s[%d:%d], s67 offen lds" % (VWF if n == 0 else 187, 24 + 4 * n, 27 + 4 * n), tag))
        out.append("s_add_u32 s67, s67, %d" % (32 * 3072))
        out.append("s_cmp_ge_u32 s67, %d" % (640 * 3072))
        out.append("s_cselect_b32 s67, 0, s67")
        return out
    def dma_x(xb):
        out = []; tag = "X%d" % xb; slot = xb % 3
        out.append("s_add_u32 s44, s45, s65")
        for g in range(2):
            out.append("s_add_u32 m0, s57, %d" % (slot * 16384 + g * 1024))
            out.append("s_nop 0")
            out.append(("buffer_load_dwordx4 v%d, s[16:19], s44 offen lds" % (VX0 + g), tag))
        out.append("s_add_u32 s65, s65, 128")
        out.append("s_cmp_ge_u32 s65, 1280")
        out.append("s_cselect_b32 s65, 0, s65")
        return out

    a("s_cmp_eq_u32 s61, 1")
    a("s_cbranch_scc1 L_k1_roleB")
    for role in range(2):
        vm = Vm(a)
        def emit(l):
            if isinstance(l, tuple):
                a(l[0]); vm.issue(l[1])
            elif l == "WAIT_CSP": vm.wait("CSP")
            elif l == "WAIT_POLL": vm.wait("POLL")
            else:
                a(l)
        if role == 1:
            a.label("L_k1_roleB")
        nt = 4 if role == 0 else 6
        t0 = 0 if role == 0 else 4
        WF = [16, 40]
        XF = [32, 56] if role == 0 else [160, 164]
        for l in dma_w(role, 0): emit(l)
        for l in dma_x(0): emit(l)
        for l in dma_w(role, 1): emit(l)
        srd(a, 32, 14, 32 * 1024 * 1024)
        srd(a, 36, 8, 32 * 800)
        a("v_lshlrev_b32 v5, 3, v3")
        a("v_bfe_u32 v6, v1, 2, 2")
        a("v_add_u32 v5, v5, v6")
        a("v_mul_u32_u24 v5, %d, v5" % (256 if role == 0 else 192))
        a("v_bfe_u32 v7, v1, 4, 1")
        a("v_lshl_add_u32 v5, v7, 5, v5")
        a("v_and_b32 v7, 3, v1")
        a("v_lshl_add_u32 v5, v7, 3, v5")
        TRA = [TRB0, TRB1, 184, 185]
        if role == 0:
            for t in range(4):
                a("v_xor_b32 v7, %d, v6" % t)
                a("v_lshl_add_u32 v%d, v7, 6, v5" % TRA[t])
        else:
            a("v_add_u32 v%d, 32768, v5" % TRB0)
        a("s_lshl_b32 s43, s60, 5")
        a("v_add_u32 v5, s43, v4")
        a("v_lshlrev_b32 v5, 7, v5")
        a("v_add_u32 v5, %d, v5" % XS)
        a("v_bfe_u32 v6, v4, 1, 3")
        for ks in range(4):
            a("v_add_u32 v7, %d, v3" % (2 * ks))
            a("v_xor_b32 v7, v7, v6")
            a("v_lshl_add_u32 v%d, v7, 4, v5" % (XR0 + ks))
        a("s_lshl_b32 s63, s60, 2")
        a("s_add_u32 s64, s60, 4")
        a("s_min_u32 s64, s64, 5")
        a("s_lshl_b32 s64, s64, 2")
        if role == 0:
            a("s_lshl_b32 s43, s42, 12")
            a("s_lshl_b32 s44, s41, 8")
            a("s_add_u32 s43, s43, s44")
            a("s_add_u32 s43, s43, %d" % FLG_OFF)
            a("v_mov_b32 v5, 0")
            a("s_mov_b64 exec, 1")
            a("buffer_store_dword v5, v5, s[32:35], s43 offen sc1")
            vm.issue("FLG")
            a("s_mov_b64 exec, -1")
            a("s_mul_i32 s43, s42, 1600")
            PH = 64
            for it in range(7):
                a("v_add_u32 v5, %d, v0" % (256 * it))
                a("v_min_u32 v5, 1599, v5")
                a("v_mul_u32_u24 v6, 1311, v5")
                a("v_lshrrev_b32 v%d, 19, v6" % (72 + it))
                a("v_mul_u32_u24 v7, 400, v%d" % (72 + it))
                a("v_sub_u32 v%d, v5, v7" % (80 + it))
                a("v_and_b32 v8, 1, v%d" % (72 + it))
                a("v_mul_u32_u24 v8, 400, v8")
                a("v_add_u32 v8, v8, v%d" % (80 + it))
                a("v_lshlrev_b32 v8, 1, v8")
                a("buffer_load_ushort v%d, v8, s[36:39], s43 offen" % (PH + it))
                vm.issue("PH")
            for it in range(7):
                sl = 72 + it; rem = 80 + it
                a("v_mul_u32_u24 v8, 3277, v%d" % rem)
                a("v_lshrrev_b32 v8, 16, v8")
                a("v_mul_u32_u24 v9, 20, v8")
                a("v_sub_u32 v9, v%d, v9" % rem)
                a("v_and_b32 v10, 1, v%d" % sl)
                a("v_mul_u32_u24 v10, 5, v10")
                a("v_lshrrev_b32 v11, 2, v9")
                a("v_add_u32 v10, v10, v11")
                a("v_lshlrev_b32 v10, 3, v10")
                a("v_lshrrev_b32 v11, 1, v%d" % sl)
                a("v_lshl_add_u32 v10, v11, 2, v10")
                a("v_and_b32 v11, 3, v9")
                a("v_add_u32 v10, v10, v11")
                a("v_mul_u32_u24 v10, 160, v10")
                a("v_mul_u32_u24 v11, 20, v%d" % sl)
                a("v_add_u32 v11, v11, v8")
                a("v_and_b32 v13, 0x73, v11")
                a("v_bfe_u32 v14, v11, 2, 1")
                a("v_lshl_add_u32 v13, v14, 3, v13")
                a("v_bfe_u32 v14, v11, 3, 1")
                a("v_lshl_add_u32 v13, v14, 2, v13")
                a("v_lshl_add_u32 v10, v13, 1, v10")
                a("v_add_u32 v%d, %d, v10" % (88 + it, IMG))
        else:
            a("v_mov_b32 v8, 0"); a("v_mov_b32 v9, 0"); a("v_mov_b32 v10, 0"); a("v_mov_b32 v11, 0")
            a("v_subrev_u32 v7, 256, v0")
            a("v_lshlrev_b32 v5, 4, v7")
            a("v_add_u32 v5, %d, v5" % IMG)
            for i in range(3):
                a("ds_write_b128 v5, v[8:11] offset:%d" % (i * 4096))
            a("v_cmp_gt_u32 vcc, 192, v7")
            a("s_and_saveexec_b64 s[50:51], vcc")
            a("ds_write_b128 v5, v[8:11] offset:%d" % (3 * 4096))
            a("s_mov_b64 exec, s[50:51]")
            a("v_mov_b32 v5, %d" % CNT)
            a("ds_write_b64 v5, v[8:9]")
            a("ds_write_b64 v5, v[8:9] offset:8")

            a("v_lshrrev_b32 v5, 5, v7")
            a("v_lshlrev_b32 v5, 13, v5")
            a("v_lshl_add_u32 v5, v4, 8, v5")
            a("v_and_b32 v6, 3, v4")
            a("v_xor_b32 v6, 3, v6")
            a("v_lshl_add_u32 v5, v6, 6, v5")
            a("v_add_u32 v5, 48, v5")
            a("v_mov_b32 v8, 0x3f80")
            a("v_cmp_gt_u32 vcc, 128, v7")
            a("s_and_saveexec_b64 s[50:51], vcc")
            a("ds_write_b128 v5, v[8:11]")
            a("s_mov_b64 exec, s[50:51]")
        for i in range(6):
            a("v_mov_b32 v%d, 0" % (ST2 + i))

        srd(a, 52, 58, 256) if False else None
        a("s_mov_b32 s52, s58")
        a("s_and_b32 s53, s59, 0xffff")
        a("s_mov_b32 s54, 256")
        a("s_mov_b32 s55, 0x00020000")
        a("s_lshl_b32 s56, s42, 2")
        a("s_add_u32 s56, s56, 128")
        a("s_lshl_b32 s43, s42, 4")
        a("s_mul_i32 s50, s43, 1536")
        a("s_add_u32 s50, s50, %d" % CSP_OFF)
        a("s_mul_i32 s51, s41, 1536")
        a("s_add_u32 s51, s51, s50")
        a("s_lshl_b32 s43, s60, 7")
        a("s_add_u32 s51, s51, s43")
        if role: a("s_add_u32 s51, s51, 512")
        a("v_lshlrev_b32 v235, 6, v2")
        a("v_add_u32 v235, v235, v1")
        a("v_min_u32 v235, 319, v235")
        a("v_lshlrev_b32 v235, 2, v235")
        if role == 0:
            a("s_lshl_b32 s62, s41, 13")
            a("s_add_u32 s62, s62, %d" % SSP_OFF)
            a("s_lshl_b32 s70, s41, 2")
            a("s_lshl_b32 s43, s60, 5")
            a("v_add_u32 v188, s43, v4")
            a("v_lshlrev_b32 v188, 2, v188")
        def publish():
            out = []
            for k in range(1 if role == 0 else 2):
                out.append("v_add_f32 v%d, v%d, v%d" % (CSV + 2 * k, CSV + 2 * k, CSV + 2 * k + 1))
                out.append("v_mov_b32 v%d, v%d" % (CSV + 2 * k + 1, CSV + 2 * k))
                out.append("s_nop 1")
                out.append("v_permlane32_swap_b32 v%d, v%d" % (CSV + 2 * k + 1, CSV + 2 * k))
                out.append("s_nop 1")
                out.append("v_add_f32 v%d, v%d, v%d" % (CSV + 2 * k, CSV + 2 * k, CSV + 2 * k + 1))
                out.append("v_lshlrev_b32 v%d, 2, v4" % TMP)
                out.append(("buffer_store_dword v%d, v%d, s[32:35], s51 offen offset:%d sc1" % (CSV + 2 * k, TMP, 512 * k), "CSP"))
            if role == 0:
                out.append("v_add_f32 v%d, v%d, v%d" % (ST2, ST2, ST2 + 1))
                out.append("v_mov_b32 v%d, v%d" % (ST2 + 1, ST2))
                out.append("s_lshl_b32 s43, s42, 9")
                out.append("s_add_u32 s43, s43, s62")
                out.append("v_permlane32_swap_b32 v%d, v%d" % (ST2 + 1, ST2))
                out.append("s_nop 1")
                out.append("v_add_f32 v%d, v%d, v%d" % (ST2, ST2, ST2 + 1))
                out.append(("buffer_store_dword v%d, v188, s[32:35], s43 offen sc1" % ST2, "CSP"))
            return out
        def signal():
            if role: return []
            out = []
            out.append("s_cmp_lt_u32 s41, 10")
            out.append("s_cselect_b32 s43, 1, 0")
            out.append("s_cmp_eq_u32 s40, 0")
            out.append("s_cselect_b32 s43, s43, 0")
            out.append("v_mov_b32 v%d, 1" % TMP)
            out.append("v_mov_b32 v%d, 0" % (TMP + 1))
            out.append("s_mov_b32 exec_lo, s43")
            out.append("s_mov_b32 exec_hi, 0")
            out.append(("buffer_atomic_add v%d, v%d, s[52:55], s56 offen sc1" % (TMP, TMP + 1), "SIG"))
            out.append("s_cmp_lt_u32 s42, 10")
            out.append("s_cselect_b32 s43, 1, 0")
            out.append("s_cmp_eq_u32 s40, 0")
            out.append("s_cselect_b32 s43, s43, 0")
            out.append("s_mov_b32 exec_lo, s43")
            out.append(("buffer_atomic_add v%d, v%d, s[52:55], s70 offen sc1" % (TMP, TMP + 1), "SIG"))
            out.append("s_mov_b64 exec, -1")
            return out
        def poll():
            out = ["v_mov_b32 v%d, 0" % (TMP + 1), ("buffer_load_dword v234, v%d, s[52:55], s56 offen sc1" % (TMP + 1), "POLL")]
            if role == 0: out.append(("buffer_load_dword v189, v%d, s[52:55], s70 offen sc1" % (TMP + 1), "POLL"))
            return out
        def gather(inloop):
            out = []
            if inloop:
                out.append("WAIT_POLL")
                if role == 0: out.append("v_min_u32 v234, v234, v189")
                out.append("s_nop 0")
                out.append("v_readfirstlane_b32 s47, v234")
            out.append("s_mov_b32 s43, s50")
            for i in range(10):
                out.append(("buffer_load_dword v%d, v235, s[32:35], s43 offen sc1" % (224 + i), "GAT"))
                if i < 9: out.append("s_add_u32 s43, s43, 1536")
            if role == 0:
                for i in range(8):
                    out.append(("buffer_load_dword v%d, v188, s[32:35], s62 offen offset:%d sc1" % (190 + i, 512 * i), "GAT"))
                out.append("s_add_u32 s43, s62, 4096")
                for i in range(8, 10):
                    out.append(("buffer_load_dword v%d, v188, s[32:35], s43 offen offset:%d sc1" % (190 + i, 512 * (i - 8)), "GAT"))
            return out
        def frag_reads(st, kk, par):
            fs = WF[par]; slot = st % 4
            out = ["ds_read_b128 %s, v%d offset:%d" % (vr(XF[par], 4), XR0 + 2 * (st & 1) + kk, ((st >> 1) % 3) * 16384)]
            for t in range(nt):
                for rd in range(2):
                    if role == 0:
                        out.append("ds_read_b64_tr_b16 %s, v%d offset:%d" % (vr(fs + 4 * t + 2 * rd, 2), TRA[t], slot * 8192 + kk * 4096 + rd * 1024))
                    else:
                        out.append("ds_read_b64_tr_b16 %s, v%d offset:%d" % (vr(fs + 4 * t + 2 * rd, 2), TRB0, slot * 12288 + (t & 1) * 6144 + kk * 3072 + rd * 768 + (t >> 1) * 64))
            return out
        vm.wait(["W0", "X0"], " lgkmcnt(0)")
        a("s_barrier")
        if role == 0: stamp()
        for l in frag_reads(0, 0, 0): a(l)
        if role == 0:
            vm.wait("PH")
            for it in range(7):
                a("ds_write_b16 v%d, v%d" % (88 + it, 64 + it))
            a("s_nop 1")
        for i in range(16 * nt):
            a("v_mov_b32 v%d, 0" % (ACC + i))
        for st in range(20):
            for kk in range(2):
                g = st * 2 + kk
                par = g & 1
                cur = WF[par]
                a("s_waitcnt lgkmcnt(0)")
                bar = False; rd = []; dm = []
                if kk == 0:
                    rd = frag_reads(st, 1, par ^ 1)
                    if st == 0: dm = dma_x(1) + dma_w(role, 2)
                    if st == 1: dm = dma_x(2)
                elif st < 19:
                    bar = True
                    rd = frag_reads(st + 1, 0, par ^ 1)
                    if st == 0: dm = dma_w(role, 3)
                    if st + 4 < 20: dm = dm + dma_w(role, st + 4)
                    if (st & 1) and (st >> 1) + 3 < 10: dm = dm + dma_x((st >> 1) + 3)
                groups = []
                for k in range((1 if role == 0 else 2) if g < 4 else 0):
                    for dd in range(2):
                        gq = ["s_set_gpr_idx_on s%d, 0x2" % (63 + k)]
                        for d in (2 * dd, 2 * dd + 1):
                            gq.append("v_lshlrev_b32 v%d, 16, v%d" % (TMP + 2 * (d & 1), cur + d))
                            gq.append("v_and_b32 v%d, 0xffff0000, v%d" % (TMP + 2 * (d & 1) + 1, cur + d))
                        gq.append("s_set_gpr_idx_off")
                        for d in range(2):
                            gq.append("v_pk_add_f32 %s, %s, %s" % (vr(CSV + 2 * k, 2), vr(CSV + 2 * k, 2), vr(TMP + 2 * d, 2)))
                        groups.append(gq)
                if role == 0 and g < 4:
                    xt = XF[par]
                    for dd in range(2):
                        gq = []
                        for d in (2 * dd, 2 * dd + 1):
                            gq.append("v_lshlrev_b32 v%d, 16, v%d" % (TMP + 2 * (d & 1), xt + d))
                            gq.append("v_and_b32 v%d, 0xffff0000, v%d" % (TMP + 2 * (d & 1) + 1, xt + d))
                        for d in range(2):
                            gq.append("v_pk_fma_f32 %s, %s, %s, %s" % (vr(ST2, 2), vr(TMP + 2 * d, 2), vr(TMP + 2 * d, 2), vr(ST2, 2)))
                        groups.append(gq)
                if 'nodot' in EXP: groups = []
                if 'nodma' in EXP: dm = []
                if 'notr' in EXP: rd = rd[:1]
                slots = [[] for _ in range(nt)]
                first = 1 if bar else 0
                nrs = 3 if role else 2
                per = (len(rd) + nrs - 1) // nrs if rd else 0
                for i, l in enumerate(rd):
                    slots[first + i // per].append(l)
                for i, gq in enumerate(groups):
                    slots[(nt - 4 + i) if role else (i if g < 4 else 2 + i)].extend(gq)
                if 'noshare' in EXP: pass
                elif g == 4: slots[0].extend(publish())
                elif g == 9: slots[nt - 1].extend(signal())
                elif g == 29: slots[nt - 1].extend(poll())
                elif g == 33: slots[nt - 1].extend(gather(True))
                if dm:
                    slots[nt - 1].extend(dm)
                for t in range(nt):
                    d = ACC + 16 * t
                    if 'nomfma' not in EXP: a("v_mfma_f32_32x32x16_bf16 %s, %s, %s, %s" % (vr(d, 16), vr(cur + 4 * t, 4), vr(XF[par], 4), vr(d, 16)))
                    if t == 0 and bar:
                        need = ["W%d" % (st + 1)] + (["X%d" % ((st + 1) >> 1)] if (st & 1) else [])
                        if g == 9: need.append("CSP")
                        vm.wait(need)
                        a("s_barrier")
                    for l in slots[t]:
                        emit(l)
        if role == 0: stamp()
        if role == 0: a("s_setprio 3")
        lab = a.newlabel("gok"); lp = a.newlabel("gpoll")
        if 'noshare' in EXP: a("s_mov_b32 s47, 10")
        a("s_cmp_ge_u32 s47, 10")
        a("s_cbranch_scc1 %s" % lab)
        a.label(lp)
        a("v_mov_b32 v%d, 0" % (TMP + 1))
        a("buffer_load_dword v234, v%d, s[52:55], s56 offen sc1" % (TMP + 1))
        if role == 0: a("buffer_load_dword v189, v%d, s[52:55], s70 offen sc1" % (TMP + 1))
        a("s_waitcnt vmcnt(0)")
        if role == 0: a("v_min_u32 v234, v234, v189")
        a("s_nop 0")
        a("v_readfirstlane_b32 s47, v234")
        a("s_nop 3")
        a("s_cmp_ge_u32 s47, 10")
        a("s_cbranch_scc0 %s" % lp)
        for l in gather(False):
            a(l[0] if isinstance(l, tuple) else l)
        a.label(lab)
        a("s_waitcnt vmcnt(0)")
        vm.q = []
        if role == 0:
            for i in range(0, 10, 2):
                a("v_add_f32 v%d, v%d, v%d" % (190 + i, 190 + i, 191 + i))
            a("v_add_f32 v190, v190, v192")
            a("v_add_f32 v194, v194, v196")
            a("v_add_f32 v190, v190, v198")
            a("v_add_f32 v%d, v190, v194" % ST2)
        for i in range(0, 10, 2):
            a("v_add_f32 v%d, v%d, v%d" % (224 + i, 224 + i, 225 + i))
        a("v_add_f32 v224, v224, v226")
        a("v_add_f32 v228, v228, v230")
        a("v_add_f32 v224, v224, v232")
        a("v_add_f32 v224, v224, v228")
        a("v_add_u32 v9, %d, v235" % CS)
        a("ds_write_b32 v9, v224")
        a("s_lshl_b32 s43, s60, 8")
        a("s_add_u32 s43, s43, %d" % STT)
        a("v_lshlrev_b32 v11, 3, v4")
        a("v_add_u32 v11, s43, v11")
        a("v_lshlrev_b32 v10, 4, v3")
        a("v_add_u32 v10, %d, v10" % (CS + t0 * 128))
        def lnfix(accreg, csreg, n):
            for i in range(0, n, 2):
                a("v_pk_fma_f32 %s, %s, %s, %s" % (vr(accreg + i, 2), vr(NEGM, 2), vr(csreg + i, 2), vr(accreg + i, 2)))
            for i in range(0, n, 2):
                a("v_pk_mul_f32 %s, %s, %s" % (vr(accreg + i, 2), vr(RSTD, 2), vr(accreg + i, 2)))
        def kv_gather():
            a("s_barrier")
            if role == 0: stamp()
            a("s_mul_i32 s46, s42, %d" % (16 * 7680))
            a("s_add_u32 s46, s46, %d" % PART_OFF)
            a("v_lshlrev_b32 v8, 3, v1")
            for jj in range(2):
                a("s_add_u32 s54, s40, %d" % (8 * jj))
                a("s_min_u32 s54, s54, 14")
                a("s_lshl_b32 s55, s54, 9")
                a("s_add_u32 s55, s55, s46")
                for rr in range(16):
                    a("buffer_load_dwordx2 %s, v8, s[32:35], s55 offen sc1" % vr(104 + 64 * jj + 4 * rr + 2, 2))
                    if rr < 15: a("s_add_u32 s55, s55, 7680")
            for jj in range(2):
                B = 104 + 64 * jj
                a("s_add_u32 s54, s40, %d" % (8 * jj))
                a("s_min_u32 s54, s54, 14")
                a("s_mul_i32 s55, s54, 11")
                a("s_lshr_b32 s55, s55, 5")
                a("s_mul_i32 s56, s55, 3")
                a("s_sub_u32 s56, s54, s56")
                a("s_lshl_b32 s55, s55, 4")
                a("s_lshl_b32 s56, s56, 4")
                a("v_and_b32 v39, 15, v1")
                a("v_add_u32 v39, s56, v39")
                a("v_lshrrev_b32 v40, 4, v1")
                a("v_lshlrev_b32 v40, 2, v40")
                a("v_add_u32 v40, s55, v40")
                a("v_cmp_le_u32 vcc, 40, v40")
                a("s_nop 1")
                a("v_cndmask_b32 v41, 0, 1, vcc")
                a("v_mul_u32_u24 v42, 40, v41")
                a("v_sub_u32 v40, v40, v42")
                a("v_mul_u32_u24 v42, 20, v41")
                a("v_sub_u32 v42, v39, v42")
                a("v_cmp_gt_u32 s[50:51], 20, v42")
                a("v_cmp_eq_u32 s[48:49], 40, v39")
                a("s_nop 1")
                a("v_cndmask_b32 v42, v42, 20, s[48:49]")
                a("s_or_b64 s[50:51], s[50:51], s[48:49]")
                a("v_lshrrev_b32 v43, 2, v42")
                a("v_lshlrev_b32 v43, 3, v43")
                a("v_lshl_add_u32 v43, v41, 2, v43")
                a("v_and_b32 v44, 3, v42")
                a("v_add_u32 v43, v43, v44")
                a("v_mul_u32_u24 v43, 160, v43")
                a("v_lshrrev_b32 v44, 3, v40")
                a("v_lshlrev_b32 v44, 4, v44")
                a("v_lshl_add_u32 v44, v41, 3, v44")
                a("v_and_b32 v45, 7, v40")
                a("v_add_u32 v44, v44, v45")
                a("v_lshl_add_u32 v43, v44, 1, v43")
                a("v_add_u32 v43, %d, v43" % IMG)
                a("s_waitcnt vmcnt(%d)" % (16 - 16 * jj))
                for rr in range(16):
                    R = B + 4 * rr
                    a("v_lshlrev_b32 v%d, 16, v%d" % (R, R + 2))
                    a("v_and_b32 v%d, 0xffff0000, v%d" % (R + 1, R + 2))
                    a("v_lshlrev_b32 v%d, 16, v%d" % (R + 2, R + 3))
                    a("v_and_b32 v%d, 0xffff0000, v%d" % (R + 3, R + 3))
                for step in (8, 4, 2, 1):
                    for rr in range(step):
                        for i in (0, 2):
                            a("v_pk_add_f32 %s, %s, %s" % (vr(B + 4 * rr + i, 2), vr(B + 4 * rr + i, 2), vr(B + 4 * (rr + step) + i, 2)))
                a("v_cvt_pk_bf16_f32 v44, v%d, v%d" % (B, B + 1))
                a("v_cvt_pk_bf16_f32 v45, v%d, v%d" % (B + 2, B + 3))
                a("s_and_saveexec_b64 s[48:49], s[50:51]")
                a("ds_write_b64 v43, v[44:45]")
                a("s_mov_b64 exec, s[48:49]")
            a("s_waitcnt lgkmcnt(0)")
            a("s_barrier")
        if role == 0:
            a.nop(6)
            a("v_mov_b32 v5, v%d" % (ACC + 60))
            a("v_mov_b32 v6, v%d" % (ACC + 60))
            a("s_nop 1")
            a("v_permlane32_swap_b32 v5, v6")
            a("s_nop 1")
            a("v_mov_b32 v8, 0x3acccccd")
            a("v_mul_f32 v12, v5, v8")
            a("v_mul_f32 v13, v%d, v8" % ST2)
            a("v_fma_f32 v13, -v12, v12, v13")
            a("v_max_f32 v13, 0, v13")
            a("v_cvt_pk_bf16_f32 v14, v12, v13")
            a("v_lshlrev_b32 v12, 16, v14")
            a("v_and_b32 v13, 0xffff0000, v14")
            a("v_add_f32 v13, 0x3727c5ac, v13")
            a("v_cvt_pk_bf16_f32 v14, v13, v13")
            a("v_and_b32 v13, 0xffff0000, v14")
            a("v_sqrt_f32 v13, v13")
            a("s_nop 0")
            a("v_cvt_pk_bf16_f32 v14, v13, v13")
            a("v_and_b32 v13, 0xffff0000, v14")
            a("v_rcp_f32 v14, v13")
            a("v_sub_f32 v13, 0, v12")
            a("v_mov_b32 v12, v13")
            a("v_mov_b32 v15, v14")
            a("ds_write_b64 v11, v[13:14]" if False else "ds_write_b32 v11, v13")
            a("ds_write_b32 v11, v14 offset:4")
            a("s_waitcnt lgkmcnt(0)")
            a("s_barrier")
            CQ = 160
            for t in range(4):
                for q in range(4):
                    if t == 3 and q == 3: continue
                    a("ds_read_b128 %s, v10 offset:%d" % (vr(CQ + 16 * t + 4 * q, 4), t * 128 + q * 32))
            a("v_mul_u32_u24 v9, 160, v4")
            a("v_lshl_add_u32 v9, v3, 4, v9")
            a("v_add_u32 v9, %d, v9" % IMG)
            a("s_waitcnt lgkmcnt(0)")
            lnfix(ACC, CQ, 60)
            for i in range(30):
                a("v_cvt_pk_bf16_f32 v%d, v%d, v%d" % (16 + i, ACC + 2 * i, ACC + 2 * i + 1))
            for tp in range(3):
                for s in range(5):
                    a("ds_read_b128 %s, v9 offset:%d" % (vr(160 + 4 * (tp * 5 + s), 4), tp * 32 * 160 + s * 32))
            for i in range(48):
                a("v_mov_b32 v%d, 0" % (64 + i))
            a("s_lshl_b32 s43, s60, 5")
            a("v_add_u32 v11, s43, v4")
            a("v_mul_u32_u24 v11, 288, v11")
            a("v_add_u32 v11, %d, v11" % TI)
            a("v_lshl_add_u32 v10, v3, 3, v11")
            a("s_waitcnt lgkmcnt(0)")
            for s in range(5):
                for tp in range(3):
                    a("v_mfma_f32_32x32x16_bf16 %s, %s, %s, %s" % (vr(64 + 16 * tp, 16), vr(160 + 4 * (tp * 5 + s), 4), vr(16 + 4 * s, 4), vr(64 + 16 * tp, 16)))
            for i in range(5):
                a("ds_write_b64 v10, %s offset:%d" % (vr(36 + 2 * i, 2), 160 + 16 * i))
            a("s_mov_b32 s50, 0"); a("s_mov_b32 s51, -1")
            a("s_mov_b32 s52, -1"); a("s_mov_b32 s53, 0")
            a("s_lshl_b32 s43, s41, 4")
            a("s_add_u32 s43, s43, s42")
            a("s_lshl_b32 s43, s43, 2")
            a("s_add_u32 s43, s43, s60")
            a("s_mul_i32 s47, s43, 5120")
            a("s_add_u32 s47, s47, %d" % PHIQ_OFF)
            a("v_mul_u32_u24 v9, 160, v4")
            a("v_mov_b32 v16, 0x%x" % LOG2E)
            a("v_mov_b32 v17, 0x%x" % LOG2E)
            a("v_mov_b32 v20, 0x3f80"); a("v_mov_b32 v21, 0"); a("v_mov_b32 v22, 0"); a("v_mov_b32 v23, 0")
            a("s_mov_b64 exec, s[52:53]")
            a("ds_write_b128 v11, v[20:23] offset:240")
            a("s_mov_b64 exec, -1")
            a.nop(8)
            for i in range(0, 40, 2):
                a("v_cvt_pk_bf16_f32 v%d, v%d, v%d" % (112 + i // 2, 64 + i, 65 + i))
            for i in range(0, 40, 2):
                a("v_lshlrev_b32 v%d, 16, v%d" % (64 + i, 112 + i // 2))
                a("v_and_b32 v%d, 0xffff0000, v%d" % (65 + i, 112 + i // 2))
            for hs in range(2):
                X = 64 + 20 * hs
                mx, mn = 24 + 4 * hs, 26 + 4 * hs
                a("v_max3_f32 v%d, v%d, v%d, v%d" % (mx, X, X + 1, X + 2))
                a("v_min3_f32 v%d, v%d, v%d, v%d" % (mn, X, X + 1, X + 2))
                for i in range(3, 19, 2):
                    a("v_max3_f32 v%d, v%d, v%d, v%d" % (mx, mx, X + i, X + i + 1))
                    a("v_min3_f32 v%d, v%d, v%d, v%d" % (mn, mn, X + i, X + i + 1))
                a("v_max_f32 v%d, v%d, v%d" % (mx, mx, X + 19))
                a("v_min_f32 v%d, v%d, v%d" % (mn, mn, X + 19))
                a("v_mul_f32 v%d, v%d, v16" % (mx, mx))
                a("v_mul_f32 v%d, v%d, v16" % (mn, mn))
                a("v_sub_f32 v%d, 0, v%d" % (mx, mx))
                a("v_mov_b32 v%d, v%d" % (mx + 1, mx))
                a("v_mov_b32 v%d, v%d" % (mn + 1, mn))
            for hs in range(2):
                X = 64 + 20 * hs
                mx, mn = 24 + 4 * hs, 26 + 4 * hs
                for sign in range(2):
                    E = 160 + 40 * hs + 20 * sign
                    for i in range(0, 20, 2):
                        if sign == 0:
                            a("v_pk_fma_f32 %s, %s, v[16:17], %s" % (vr(E + i, 2), vr(X + i, 2), vr(mx, 2)))
                        else:
                            a("v_pk_fma_f32 %s, %s, v[16:17], %s neg_lo:[1,0,0] neg_hi:[1,0,0]" % (vr(E + i, 2), vr(X + i, 2), vr(mn, 2)))
            for i in range(80):
                a("v_exp_f32 v%d, v%d" % (160 + i, 160 + i))
            a("s_nop 0")
            for gi in range(4):
                E = 160 + 20 * gi; S = 32 + 2 * gi
                a("v_pk_add_f32 %s, %s, %s" % (vr(S, 2), vr(E, 2), vr(E + 2, 2)))
                for i in range(4, 20, 2):
                    a("v_pk_add_f32 %s, %s, %s" % (vr(S, 2), vr(S, 2), vr(E + i, 2)))
            for gi in range(4):
                S = 32 + 2 * gi
                a("v_add_f32 v%d, v%d, v%d" % (S, S, S + 1))
            for gi in range(4):
                S = 32 + 2 * gi
                a("v_rcp_f32 v%d, v%d" % (S, S))
            a("s_nop 0")
            for gi in range(4):
                S = 32 + 2 * gi
                a("v_mov_b32 v%d, v%d" % (S + 1, S))
            for gi in range(4):
                E = 160 + 20 * gi; S = 32 + 2 * gi
                for i in range(0, 20, 2):
                    a("v_pk_mul_f32 %s, %s, %s" % (vr(E + i, 2), vr(E + i, 2), vr(S, 2)))
            for i in range(40):
                a("v_cvt_pk_bf16_f32 v%d, v%d, v%d" % (64 + i, 160 + 2 * i, 161 + 2 * i))
            a("s_mov_b64 exec, s[52:53]")
            for i in range(10):
                a("ds_write_b128 v11, %s offset:%d" % (vr(64 + 4 * i, 4), 16 * i))
            a("s_mov_b64 exec, -1")
            a("s_nop 1")
            for i in range(20):
                a("v_permlane32_swap_b32 v%d, v%d" % (64 + i, 84 + i))
            stamp()
            a("v_lshrrev_b32 v5, 4, v1")
            a("v_bfe_u32 v6, v1, 2, 2")
            a("v_lshl_add_u32 v5, v5, 2, v6")
            a("v_mul_u32_u24 v5, 288, v5")
            a("v_and_b32 v6, 3, v1")
            a("v_lshl_add_u32 v5, v6, 3, v5")
            a("v_add_u32 v5, %d, v5" % TI)
            a("s_lshl_b32 s43, s42, 4")
            a("s_add_u32 s43, s43, s41")
            a("s_mul_i32 s47, s43, 7680")
            a("s_add_u32 s47, s47, %d" % PART_OFF)
            a("v_lshlrev_b32 v8, 4, v1")
            def lsync(idx):
                lp = a.newlabel("lsync")
                a("v_mov_b32 v6, %d" % (CNT + 4 * idx))
                a("v_mov_b32 v7, 1")
                a("s_waitcnt lgkmcnt(0)")
                a("s_mov_b64 exec, 1")
                a("ds_add_u32 v6, v7")
                a("s_mov_b64 exec, -1")
                a.label(lp)
                a("ds_read_b32 v7, v6")
                a("s_waitcnt lgkmcnt(0)")
                a("v_readfirstlane_b32 s43, v7")
                a("s_nop 3")
                a("s_cmp_lt_u32 s43, 4")
                a("s_cbranch_scc1 %s" % lp)
            lsync(0)
            for jj in range(4):
                a("s_add_u32 s54, s60, %d" % (4 * jj))
                a("s_min_u32 s54, s54, 14")
                a("s_mul_i32 s55, s54, 11")
                a("s_lshr_b32 s55, s55, 5")
                a("s_mul_i32 s56, s55, 3")
                a("s_sub_u32 s56, s54, s56")
                a("s_lshl_b32 s55, s55, 5")
                a("s_lshl_b32 s56, s56, 5")
                a("s_add_u32 s56, s56, 160")
                a("v_add_u32 v6, s55, v5")
                a("v_add_u32 v7, s56, v5")
                B = 104 + 32 * jj
                for kt in range(4):
                    for rd in range(2):
                        a("ds_read_b64_tr_b16 %s, v6 offset:%d" % (vr(B + 8 * kt + 2 * rd, 2), (32 * kt + 16 * rd) * 288))
                        a("ds_read_b64_tr_b16 %s, v7 offset:%d" % (vr(B + 4 + 8 * kt + 2 * rd, 2), (32 * kt + 16 * rd) * 288))
                a("s_lshl_b32 s54, s54, 9")
                a("s_add_u32 s%d, s54, s47" % (68 + jj))
            for e in range(16):
                a("v_mov_b32 v%d, 0" % (16 + e))
            a("s_waitcnt lgkmcnt(0)")
            for kt in range(4):
                for jj in range(4):
                    B = 104 + 32 * jj
                    a("v_mfma_f32_16x16x32_bf16 %s, %s, %s, %s" % (vr(16 + 4 * jj, 4), vr(B + 8 * kt, 4), vr(B + 4 + 8 * kt, 4), vr(16 + 4 * jj, 4)))
            a.nop(8)
            a("v_lshlrev_b32 v8, 3, v1")
            for jj in range(4):
                a("v_cvt_pk_bf16_f32 v%d, v%d, v%d" % (40 + 2 * jj, 16 + 4 * jj, 17 + 4 * jj))
                a("v_cvt_pk_bf16_f32 v%d, v%d, v%d" % (41 + 2 * jj, 18 + 4 * jj, 19 + 4 * jj))
            for jj in range(4):
                a("buffer_store_dwordx2 %s, v8, s[32:35], s%d offen sc1" % (vr(40 + 2 * jj, 2), 68 + jj))
            a("v_mov_b32 v32, 0"); a("v_mov_b32 v33, 0"); a("v_mov_b32 v34, 0"); a("v_mov_b32 v35, 0")
            a("v_lshlrev_b32 v5, 4, v0")
            a("v_add_u32 v5, %d, v5" % IMG)
            a("ds_write_b128 v5, v[32:35]")
            a("ds_write_b128 v5, v[32:35] offset:4096")
            a("ds_write_b128 v5, v[32:35] offset:8192")
            stamp()
            a("s_waitcnt vmcnt(0)")
            stamp()
            lsync(1)
            a("s_mov_b32 s52, s58")
            a("s_and_b32 s53, s59, 0xffff")
            a("s_mov_b32 s54, 256")
            a("s_mov_b32 s55, 0x00020000")
            a("s_lshl_b32 s56, s42, 2")
            a("s_add_u32 s56, s56, 64")
            a("v_mov_b32 v6, 1")
            a("v_mov_b32 v7, 0")
            lsk = a.newlabel("nopoll")
            a("s_cmp_lg_u32 s40, 0")
            a("s_cbranch_scc1 %s" % lsk)
            stamp()
            if STAMP: a("s_memrealtime s[100:101]")
            a("s_mov_b64 exec, 1")
            a("buffer_atomic_add v6, v7, s[52:55], s56 offen sc0 sc1")
            a("s_lshl_b32 s46, s42, 12")
            a("s_add_u32 s46, s46, %d" % FLG_OFF)
            a("s_lshl_b32 s44, s41, 8")
            a("s_add_u32 s44, s44, s46")
            a("s_waitcnt vmcnt(0)")
            a("v_readfirstlane_b32 s43, v6")
            a("s_nop 3")
            a("s_and_b32 s43, s43, 15")
            l2 = a.newlabel("notlast")
            a("s_cmp_lg_u32 s43, 15")
            a("s_cbranch_scc1 %s" % l2)
            a("s_mov_b64 exec, 0xffff")
            a("v_lshlrev_b32 v6, 8, v1")
            a("v_mov_b32 v9, 1")
            a("buffer_store_dword v9, v6, s[32:35], s46 offen sc1")
            a("s_mov_b64 exec, 1")
            a.label(l2)
            lp = a.newlabel("kpoll")
            a.label(lp)
            a("s_sleep 2")
            a("buffer_load_dword v6, v7, s[32:35], s44 offen sc1")
            a("s_waitcnt vmcnt(0)")
            a("v_readfirstlane_b32 s43, v6")
            a("s_nop 3")
            a("s_cmp_lg_u32 s43, 1")
            a("s_cbranch_scc1 %s" % lp)
            a("s_mov_b64 exec, -1")
            stamp()
            a.label(lsk)
            kv_gather()
            a("v_mul_u32_u24 v9, 160, v4")
            a("v_lshl_add_u32 v9, v3, 4, v9")
            a("v_add_u32 v9, %d, v9" % IMG)
            for u in range(2):
                for s_ in range(5):
                    a("ds_read_b128 %s, v9 offset:%d" % (vr(160 + 4 * (u * 5 + s_), 4), u * 32 * 160 + s_ * 32))
            for i in range(32):
                a("v_mov_b32 v%d, 0" % (128 + i))
            a("s_lshl_b32 s43, s41, 1")
            a("s_lshr_b32 s47, s60, 1")
            a("s_add_u32 s43, s43, s47")
            a("s_mul_i32 s43, s43, %d" % (68 * 4096))
            a("s_and_b32 s47, s60, 1")
            a("s_lshl_b32 s47, s47, 11")
            a("s_add_u32 s47, s47, s43")
            a("s_mul_i32 s43, s42, 40")
            a("v_mul_u32_u24 v9, 20, v3")
            a("v_add_u32 v9, s43, v9")
            a("v_lshlrev_b32 v10, 6, v4")
            for m in range(5):
                a("v_add_u32 v11, %d, v9" % (4 * m))
                a("v_lshrrev_b32 v12, 5, v11")
                a("v_lshlrev_b32 v12, 12, v12")
                a("v_and_b32 v11, 31, v11")
                a("v_lshl_add_u32 v12, v11, 1, v12")
                a("v_add_u32 v%d, v12, v10" % (40 + m))
            a("s_waitcnt lgkmcnt(0)")
            for s_ in range(5):
                for u in range(2):
                    a("v_mfma_f32_32x32x16_bf16 %s, %s, %s, %s" % (vr(128 + 16 * u, 16), vr(160 + 4 * (u * 5 + s_), 4), vr(84 + 4 * s_, 4), vr(128 + 16 * u, 16)))
            a.nop(12)
            for i in range(0, 20, 2):
                a("v_cvt_pk_bf16_f32 v%d, v%d, v%d" % (48 + i // 2, 128 + i, 129 + i))
            a("v_cvt_pk_bf16_f32 v58, v148, v148")
            a("v_and_b32 v58, 0xffff0000, v58")
            a("v_add_f32 v58, 0x358637bd, v58")
            a("v_cvt_pk_bf16_f32 v58, v58, v58")
            a("v_and_b32 v58, 0xffff0000, v58")
            a("v_rcp_f32 v58, v58")
            for i in range(0, 20, 2):
                a("v_lshlrev_b32 v%d, 16, v%d" % (128 + i, 48 + i // 2))
                a("v_and_b32 v%d, 0xffff0000, v%d" % (129 + i, 48 + i // 2))
            a("v_mov_b32 v59, v58")
            for i in range(0, 20, 2):
                a("v_pk_mul_f32 %s, %s, v[58:59]" % (vr(128 + i, 2), vr(128 + i, 2)))
            for i in range(0, 20, 2):
                a("v_cvt_pk_bf16_f32 v%d, v%d, v%d" % (48 + i // 2, 128 + i, 129 + i))
            for m in range(5):
                a("buffer_store_dwordx2 %s, v%d, s[32:35], s47 offen" % (vr(48 + 2 * m, 2), 40 + m))
            if STAMP:
                a("s_waitcnt vmcnt(0)")
                stamp()
                a("s_waitcnt lgkmcnt(0)")
                a("s_cmp_lg_u32 s40, 0")
                a("s_cbranch_scc1 L_k1_end")
                a("v_mov_b32 v2, s98")
                a("v_mov_b32 v3, s100")
                a("s_lshl_b32 s43, s2, 3")
                a("s_add_u32 s43, s43, %d" % (30 * 1024 * 1024))
                a("v_mov_b32 v5, 0")
                a("buffer_store_dwordx2 v[2:3], v5, s[32:35], s43 offen")
                a("s_cmp_lg_u32 s2, 0")
                a("s_cbranch_scc1 L_k1_end")
                srd(a, 16, 58, 256)
                a("v_mov_b32 v2, 0")
                for i in range(nst[0]):
                    a("s_sub_u32 s43, s%d, s78" % (78 + 2 * i))
                    a("v_mov_b32 v3, s43")
                    a("buffer_store_dword v3, v2, s[16:19], 0 offen offset:%d" % (4 * i))
            a("s_endpgm")
        else:
            a("s_waitcnt lgkmcnt(0)")
            a("s_barrier")
            a("ds_read_b32 v12, v11")
            a("ds_read_b32 v14, v11 offset:4")
            def cq(t, q):
                i = 16 * t + 4 * q
                return 160 + i if i < 64 else 16 + (i - 64)
            for t in range(6):
                for q in range(4):
                    a("ds_read_b128 %s, v10 offset:%d" % (vr(cq(t, q), 4), t * 128 + q * 32))
            a("s_lshl_b32 s43, s41, 1")
            a("s_lshr_b32 s47, s60, 1")
            a("s_add_u32 s43, s43, s47")
            a("s_mul_i32 s43, s43, 68")
            a("s_mul_i32 s47, s42, 3")
            a("s_add_u32 s43, s43, s47")
            a("s_add_u32 s43, s43, 20")
            a("s_lshl_b32 s43, s43, 12")
            a("s_and_b32 s47, s60, 1")
            a("s_lshl_b32 s47, s47, 11")
            a("s_add_u32 s47, s47, s43")
            a("v_lshlrev_b32 v5, 6, v4")
            a("v_lshl_add_u32 v5, v3, 3, v5")
            a("v_mov_b32 v48, 0xc0135761"); a("v_mov_b32 v49, 0xc0135761")
            a("v_mov_b32 v50, 0x3d372713"); a("v_mov_b32 v51, 0x3d372713")
            a("v_mov_b32 v52, 1.0"); a("v_mov_b32 v53, 1.0")
            a("s_waitcnt lgkmcnt(0)")
            a("v_mov_b32 v13, v12")
            a("v_mov_b32 v15, v14")
            for t in range(6):
                lnfix(ACC + 16 * t, cq(t, 0), 16)
            for i in range(0, 96, 2):
                a("v_cvt_pk_bf16_f32 v%d, v%d, v%d" % (160 + i // 2, ACC + i, ACC + i + 1))
            for i in range(0, 96, 2):
                a("v_lshlrev_b32 v%d, 16, v%d" % (ACC + i, 160 + i // 2))
                a("v_and_b32 v%d, 0xffff0000, v%d" % (ACC + i + 1, 160 + i // 2))
            for i in range(3):
                G = ACC + 32 * i; T = 160 + 16 * i
                for e in range(0, 16, 2):
                    a("v_pk_mul_f32 %s, %s, %s" % (vr(T + e, 2), vr(G + e, 2), vr(G + e, 2)))
                for e in range(0, 16, 2):
                    a("v_pk_fma_f32 %s, %s, v[50:51], v[52:53]" % (vr(T + e, 2), vr(T + e, 2)))
                for e in range(0, 16, 2):
                    a("v_pk_mul_f32 %s, %s, %s" % (vr(T + e, 2), vr(T + e, 2), vr(G + e, 2)))
                for e in range(0, 16, 2):
                    a("v_pk_mul_f32 %s, %s, v[48:49]" % (vr(T + e, 2), vr(T + e, 2)))
            for i in range(48):
                a("v_exp_f32 v%d, v%d" % (160 + i, 160 + i))
            a("s_nop 0")
            for e in range(0, 48, 2):
                a("v_pk_add_f32 %s, %s, v[52:53]" % (vr(160 + e, 2), vr(160 + e, 2)))
            for i in range(48):
                a("v_rcp_f32 v%d, v%d" % (160 + i, 160 + i))
            a("s_nop 0")
            for i in range(3):
                G = ACC + 32 * i; T = 160 + 16 * i
                for e in range(0, 16, 2):
                    a("v_pk_mul_f32 %s, %s, %s" % (vr(T + e, 2), vr(T + e, 2), vr(G + e, 2)))
            for e in range(0, 48, 2):
                a("v_cvt_pk_bf16_f32 v%d, v%d, v%d" % (16 + e // 2, 160 + e, 161 + e))
            for e in range(0, 48, 2):
                a("v_lshlrev_b32 v%d, 16, v%d" % (160 + e, 16 + e // 2))
                a("v_and_b32 v%d, 0xffff0000, v%d" % (161 + e, 16 + e // 2))
            for i in range(3):
                U = ACC + 32 * i + 16; T = 160 + 16 * i
                for e in range(0, 16, 2):
                    a("v_pk_mul_f32 %s, %s, %s" % (vr(T + e, 2), vr(T + e, 2), vr(U + e, 2)))
            for e in range(0, 48, 2):
                a("v_cvt_pk_bf16_f32 v%d, v%d, v%d" % (16 + e // 2, 160 + e, 161 + e))
            for i in range(3):
                for q in range(4):
                    a("buffer_store_dwordx2 %s, v5, s[32:35], s47 offen offset:%d" % (vr(16 + 8 * i + 2 * q, 2), q * 16))
                a("s_add_u32 s47, s47, 4096")
            a("s_load_dwordx2 s[4:5], s[0:1], 24")
            a("s_load_dwordx2 s[6:7], s[0:1], 56")
            a("v_subrev_u32 v7, 256, v0")
            for rnd in range(2):
                a("v_add_u32 v9, %d, v7" % (256 * rnd))
                a("v_min_u32 v9, 319, v9")
                a("v_mul_u32_u24 v10, 6554, v9")
                a("v_lshrrev_b32 v10, 16, v10")
                a("v_mul_u32_u24 v11, 10, v10")
                a("v_sub_u32 v11, v9, v11")
                a("v_bfe_u32 v12, v10, 2, 2")
                a("v_lshlrev_b32 v12, 3, v12")
                a("v_lshrrev_b32 v13, 4, v10")
                a("v_lshlrev_b32 v13, 2, v13")
                a("v_and_b32 v14, 3, v10")
                a("v_add3_u32 v12, v12, v13, v14")
                a("v_mul_u32_u24 v12, 1280, v12")
                a("v_lshl_add_u32 v%d, v11, 4, v12" % (60 + rnd))
                a("v_lshlrev_b32 v%d, 4, v9" % (62 + rnd))
            a("s_waitcnt lgkmcnt(0)")
            a("s_mov_b32 s23, 0x00020000")
            for j in range(3):
                a("s_add_u32 s43, s2, %d" % (256 * j))
                a("s_min_u32 s43, s43, 543")
                a("s_lshr_b32 s44, s43, 3")
                a("s_and_b32 s46, s43, 7")
                a("s_cmp_lt_u32 s44, 20")
                a("s_cselect_b32 s20, s4, s6")
                a("s_cselect_b32 s21, s5, s7")
                a("s_cselect_b32 s47, 0, 20")
                a("s_and_b32 s21, s21, 0xffff")
                a("s_mov_b32 s22, %d" % (1536 * 1280))
                a("s_sub_u32 s47, s44, s47")
                a("s_mul_i32 s47, s47, %d" % (32 * 1280))
                a("s_mul_i32 s43, s46, 160")
                a("s_add_u32 s47, s47, s43")
                for rnd in range(2):
                    a("buffer_load_dwordx4 %s, v%d, s[20:23], s47 offen" % (vr(64 + 8 * j + 4 * rnd, 4), 60 + rnd))
                a("s_mul_i32 s43, s46, 68")
                a("s_add_u32 s43, s43, s44")
                a("s_mul_i32 s43, s43, 5120")
                a("s_add_u32 s%d, s43, %d" % (68 + j, WT_OFF))
            for j in range(3):
                a("s_waitcnt vmcnt(%d)" % (4 - 2 * j + 2 * j if False else 4))
                for rnd in range(2):
                    a("buffer_store_dwordx4 %s, v%d, s[32:35], s%d offen" % (vr(64 + 8 * j + 4 * rnd, 4), 62 + rnd, 68 + j))
            kv_gather()
    a.label("L_k1_end")
    a("s_endpgm")
    return dict(name=name, vgpr=256, sgpr=102, grid=256, block=512, lds=LDS, accum=256)
```

```python
from asmlib import *
from layout import *
import os
EXP = os.environ.get('K2EXP', '')
def gen_k2(a):
    nst = [0]
    def stamp():
        if 'stamp' not in EXP: return
        a("s_memtime s[%d:%d]" % (60 + 2 * nst[0], 61 + 2 * nst[0]))
        nst[0] += 1
    name = "k2_kernel"
    kernel_begin(a, name)
    NS = int(os.environ.get('K2NS', '4'))
    STG = 9216
    WREG = NS * STG
    NK = 17
    LDS = 4 * WREG
    a("s_cmp_ge_u32 s2, 256")
    a("s_cbranch_scc1 L_k2_end")
    stamp()
    a("s_load_dwordx2 s[12:13], s[0:1], 80")
    a("s_load_dwordx2 s[4:5], s[0:1], 0")
    a("s_load_dwordx2 s[10:11], s[0:1], 64")
    a("s_load_dwordx2 s[58:59], s[0:1], 72")
    a("v_lshrrev_b32 v1, 6, v0")
    a("v_and_b32 v2, 63, v0")
    a("s_nop 0")
    a("v_readfirstlane_b32 s32, v1")
    a("s_and_b32 s33, s2, 7")
    a("s_lshr_b32 s39, s2, 6")
    a("s_lshl_b32 s39, s39, 3")
    a("s_add_u32 s33, s33, s39")
    a("s_lshr_b32 s34, s2, 3")
    a("s_and_b32 s34, s34, 7")
    a("s_mul_i32 s38, s32, %d" % WREG)
    a("v_lshrrev_b32 v3, 4, v2")
    a("v_and_b32 v8, 1, v3")
    a("v_lshlrev_b32 v8, 1, v8")
    a("v_lshrrev_b32 v9, 1, v3")
    a("v_mul_u32_u24 v9, 3, v9")
    a("v_xor_b32 v8, v8, v9")
    a("v_and_b32 v9, 3, v2")
    a("v_xor_b32 v9, v9, v8")
    a("v_lshlrev_b32 v9, 4, v9")
    a("v_lshrrev_b32 v10, 2, v2")
    a("v_lshlrev_b32 v10, 6, v10")
    a("v_add_u32 v4, v10, v9")
    for i in range(1, 4):
        a("v_add_u32 v%d, %d, v4" % (4 + i, 1024 * i))
    a("v_lshlrev_b32 v12, 4, v2")
    for i in range(1, 5):
        a("v_add_u32 v%d, %d, v12" % (12 + i, i * 1024))
    a("s_mul_i32 s37, s32, 17")
    a("s_mul_i32 s40, s33, 68")
    a("s_add_u32 s35, s40, s37")
    a("s_lshl_b32 s35, s35, 12")
    a("s_mul_i32 s41, s34, 68")
    a("s_add_u32 s36, s41, s37")
    a("s_mul_i32 s36, s36, 5120")
    a("s_add_u32 s36, s36, %d" % WT_OFF)
    a("s_waitcnt lgkmcnt(0)")
    srd(a, 16, 12, 32 * 1024 * 1024)
    def dma_stage(st):
        slot = st % NS
        out = []
        for i in range(4):
            out.append("s_add_u32 m0, s38, %d" % (slot * STG + i * 1024))
            out.append("s_nop 0")
            out.append("buffer_load_dwordx4 v%d, s[16:19], s35 offen%s lds" % (4 + i, ""))
        for i in range(5):
            out.append("s_add_u32 m0, s38, %d" % (slot * STG + 4096 + i * 1024))
            out.append("s_nop 0")
            out.append("buffer_load_dwordx4 v%d, s[16:19], s36 offen lds" % (12 + i))
        out.append("s_add_u32 s35, s35, 4096")
        out.append("s_add_u32 s36, s36, 5120")
        return out
    def emit(l):
        if l == "OWAIT":
            lp = a.newlabel("ow")
            a("v_mov_b32 v22, %d" % (CNT + 8))
            a.label(lp)
            a("ds_read_b32 v23, v22")
            a("s_waitcnt lgkmcnt(0)")
            a("v_readfirstlane_b32 s44, v23")
            a("s_nop 3")
            a("s_cmp_lg_u32 s44, 1")
            a("s_cbranch_scc1 %s" % lp)
        else:
            a(l)
    for l in dma_stage(0): emit(l)
    srd(a, 24, 4, 2048 * 1280)
    srd(a, 28, 10, 2048 * 1280)
    a("v_bfe_u32 v9, v2, 2, 2")
    a("v_and_b32 v10, 1, v9")
    a("v_lshlrev_b32 v10, 1, v10")
    a("v_lshrrev_b32 v11, 1, v9")
    a("v_mul_u32_u24 v11, 3, v11")
    a("v_xor_b32 v10, v10, v11")
    a("v_xor_b32 v10, v10, v3")
    a("v_and_b32 v11, 15, v2")
    a("v_lshlrev_b32 v11, 6, v11")
    a("v_lshl_add_u32 v20, v10, 4, v11")
    a("v_add_u32 v20, s38, v20")
    a("v_lshlrev_b32 v10, 2, v3")
    a("v_add_u32 v10, v10, v9")
    a("v_mul_u32_u24 v10, 160, v10")
    a("v_and_b32 v11, 3, v2")
    a("v_lshl_add_u32 v21, v11, 3, v10")
    a("v_add_u32 v21, s38, v21")
    a("v_add_u32 v21, 4096, v21")
    ACC = 32
    FR = [112, 148]
    for l in dma_stage(1): emit(l)
    def frag_reads(st):
        slot = st % NS
        fs = FR[st & 1]
        out = []
        for t in range(5):
            for rd in range(2):
                out.append("ds_read_b64_tr_b16 %s, v21 offset:%d" % (vr(fs + 4 * t + 2 * rd, 2), slot * STG + t * 32 + rd * 2560))
        for i in range(4):
            out.append("ds_read_b128 %s, v20 offset:%d" % (vr(fs + 20 + 4 * i, 4), slot * STG + i * 1024))
        return out
    def mfmas(st):
        fs = FR[st & 1]
        out = []
        for tt in range(4):
            for ct in range(5):
                d = ACC + (tt * 5 + ct) * 4
                out.append("v_mfma_f32_16x16x32_bf16 %s, %s, %s, %s" % (vr(d, 4), vr(fs + 4 * ct, 4), vr(fs + 20 + 4 * tt, 4), vr(d, 4) if st else "0"))
        return out
    stamp()
    a("s_waitcnt vmcnt(9)")
    for l in frag_reads(0): a(l)
    for st in range(2, NS):
        for l in dma_stage(st): emit(l)
    issued = NS
    for i in range(NK):
        if i + 1 < NK:
            a("s_waitcnt vmcnt(%d)" % ((issued - (i + 2)) * 9))
            for l in frag_reads(i + 1): a(l)
            a("s_waitcnt lgkmcnt(14)")
        else:
            a("s_waitcnt lgkmcnt(0)")
        m = mfmas(i)
        d = dma_stage(i + NS) if i + NS < NK else []
        if d: issued += 1
        if d and d[0] == "OWAIT":
            for l in m[:6]: a(l)
            m = m[6:]
            emit(d[0]); d = d[1:]
        di = 0
        for j, l in enumerate(m):
            a(l)
            take = 2
            while take > 0 and di < len(d):
                a(d[di]); di += 1; take -= 1
        while di < len(d):
            a(d[di]); di += 1
    stamp()
    a("s_mul_i32 s39, s33, %d" % (64 * 1280))
    a("s_mul_i32 s40, s34, 160")
    a("s_add_u32 s39, s39, s40")
    for it in range(5):
        a("v_add_u32 v9, %d, v0" % (256 * it))
        a("v_mul_u32_u24 v10, 3277, v9")
        a("v_lshrrev_b32 v10, 16, v10")
        a("v_mul_u32_u24 v11, 20, v10")
        a("v_sub_u32 v11, v9, v11")
        a("v_mul_u32_u24 v9, 336, v10")
        a("v_lshl_add_u32 v%d, v11, 4, v9" % (184 + it))
        a("v_mul_u32_u24 v10, 1280, v10")
        a("v_lshl_add_u32 v%d, v11, 3, v10" % (190 + it))
        a("buffer_load_dwordx2 %s, v%d, s[24:27], s39 offen" % (vr(196 + 2 * it, 2), 190 + it))
    a("v_and_b32 v9, 15, v2")
    a("v_mul_u32_u24 v9, 336, v9")
    a("v_lshl_add_u32 v9, v3, 4, v9")
    a("v_add_u32 v9, s38, v9")
    for tt in range(4):
        for ct in range(5):
            d = ACC + (tt * 5 + ct) * 4
            a("ds_write_b128 v9, %s offset:%d" % (vr(d, 4), tt * 16 * 336 + ct * 64))
    a("s_waitcnt lgkmcnt(0)")
    a("s_barrier")
    stamp()
    for it in range(5):
        b = 32 + it * 24
        a("v_add_u32 v10, %d, v%d" % (2 * WREG, 184 + it))
        for w in range(4):
            a("ds_read_b128 %s, v%d offset:%d" % (vr(b + 4 * w, 4), 184 + it if w < 2 else 10, (w & 1) * WREG))
    for it in range(5):
        b = 32 + it * 24
        a("s_waitcnt vmcnt(4) lgkmcnt(%d)" % (min(15, (4 - it) * 4)))
        for j in (0, 2):
            a("v_pk_add_f32 %s, %s, %s" % (vr(b + j, 2), vr(b + j, 2), vr(b + 4 + j, 2)))
            a("v_pk_add_f32 %s, %s, %s" % (vr(b + 8 + j, 2), vr(b + 8 + j, 2), vr(b + 12 + j, 2)))
        a("v_lshlrev_b32 v%d, 16, v%d" % (b + 4, 196 + 2 * it))
        a("v_and_b32 v%d, 0xffff0000, v%d" % (b + 5, 196 + 2 * it))
        a("v_lshlrev_b32 v%d, 16, v%d" % (b + 6, 197 + 2 * it))
        a("v_and_b32 v%d, 0xffff0000, v%d" % (b + 7, 197 + 2 * it))
        for j in (0, 2):
            a("v_pk_add_f32 %s, %s, %s" % (vr(b + j, 2), vr(b + j, 2), vr(b + 8 + j, 2)))
        for j in (0, 2):
            a("v_pk_add_f32 %s, %s, %s" % (vr(b + j, 2), vr(b + j, 2), vr(b + 4 + j, 2)))
        a("v_cvt_pk_bf16_f32 v%d, v%d, v%d" % (b + 20, b, b + 1))
        a("v_cvt_pk_bf16_f32 v%d, v%d, v%d" % (b + 21, b + 2, b + 3))
        a("buffer_store_dwordx2 %s, v%d, s[28:31], s39 offen" % (vr(b + 20, 2), 190 + it))
    if 'stamp' in EXP:
        a("s_waitcnt vmcnt(0)")
        stamp()
        a("s_waitcnt lgkmcnt(0)")
        a("s_cmp_lg_u32 s2, 0")
        a("s_cbranch_scc1 L_k2_end")
        a("s_cmp_lg_u32 s32, 0")
        a("s_cbranch_scc1 L_k2_end")
        srd(a, 16, 58, 256)
        a("v_mov_b32 v2, 0")
        for i in range(nst[0]):
            a("s_sub_u32 s43, s%d, s60" % (60 + 2 * i))
            a("v_mov_b32 v3, s43")
            a("buffer_store_dword v3, v2, s[16:19], 0 offen offset:%d" % (4 * i))
    a.label("L_k2_end")
    a("s_endpgm")
    return dict(name=name, vgpr=208, sgpr=96, grid=256, block=256, lds=LDS)
```

```python
from asmlib import *
from layout import *
import os
EXP = os.environ.get('K1EXP', '')

class Vm:
    def __init__(self, a):
        self.a = a; self.q = []
    def issue(self, tag):
        self.q.append(tag)
    def wait(self, tags, extra=""):
        if isinstance(tags, str): tags = [tags]
        idxs = [i for i, t in enumerate(self.q) if t in tags]
        if not idxs:
            if extra: self.a("s_waitcnt" + extra)
            return
        idx = max(idxs)
        n = len(self.q) - 1 - idx
        self.a("s_waitcnt vmcnt(%d)%s" % (min(n, 63), extra))
        self.q = self.q[idx + 1:] if n <= 63 else self.q[len(self.q) - 63:]

LOG2E = 0x3fb8aa3b
STAMP = 'stamp' in EXP
def gen_k1(a):
    nst = [0]
    def stamp():
        if not STAMP: return
        a("s_memtime s[%d:%d]" % (78 + 2 * nst[0], 79 + 2 * nst[0]))
        nst[0] += 1
    name = "k1_kernel"
    kernel_begin(a, name)
    WSL = 20480; XS = 4 * WSL
    IMG = XS + 3 * 16384
    CS = IMG + 15360
    STT = CS + 1536
    CNT = STT + 1024
    LDS = CNT + 64
    TI = 0
    ACC = 64
    NEGM, RSTD = 12, 14
    TRB0, TRB1, VWA, VWF, VX0, VX1, XR0, ST2, CSV, TMP = 236, 237, 238, 239, 240, 241, 242, 246, 248, 252
    a("s_cmp_ge_u32 s2, 256")
    a("s_cbranch_scc1 L_k1_end")
    stamp()
    if STAMP: a("s_memrealtime s[98:99]")
    a("s_load_dwordx4 s[4:7], s[0:1], 0")
    a("s_load_dwordx2 s[10:11], s[0:1], 40")
    a("s_load_dwordx2 s[12:13], s[0:1], 48")
    a("s_load_dwordx2 s[8:9], s[0:1], 16")
    a("s_load_dwordx2 s[14:15], s[0:1], 80")
    a("s_load_dwordx2 s[58:59], s[0:1], 72")
    a("v_lshrrev_b32 v2, 6, v0")
    a("v_and_b32 v1, 63, v0")
    a("s_nop 0")
    a("v_readfirstlane_b32 s40, v2")
    a("s_and_b32 s42, s2, 7")
    a("s_lshr_b32 s43, s2, 7")
    a("s_lshl_b32 s43, s43, 3")
    a("s_or_b32 s42, s42, s43")
    a("s_bfe_u32 s41, s2, 0x40003")
    a("s_and_b32 s60, s40, 3")
    a("s_lshr_b32 s61, s40, 2")
    a("v_lshrrev_b32 v3, 5, v1")
    a("v_and_b32 v4, 31, v1")
    a("v_lshrrev_b32 v5, 4, v1")
    a("v_bfe_u32 v6, v1, 2, 2")
    a("v_xor_b32 v6, v6, v5")
    a("v_and_b32 v7, 3, v1")
    a("v_lshl_add_u32 v7, v6, 2, v7")
    a("v_min_u32 v7, 14, v7")
    a("v_mul_u32_u24 v8, 13, v7")
    a("v_lshrrev_b32 v8, 6, v8")
    a("v_mul_u32_u24 v9, 5, v8")
    a("v_sub_u32 v9, v7, v9")
    a("v_lshrrev_b32 v10, 1, v8")
    a("v_sub_u32 v10, 1, v10")
    a("v_xor_b32 v8, v8, v10")
    a("v_mul_u32_u24 v8, 1280, v8")
    a("v_lshl_add_u32 v8, v9, 4, v8")
    a("v_mul_u32_u24 v9, 3840, v5")
    a("s_mul_i32 s43, s42, 80")
    a("v_add3_u32 v%d, v8, v9, s43" % VWA)
    a("v_lshrrev_b32 v5, 3, v1")
    a("v_and_b32 v6, 7, v1")
    a("v_lshrrev_b32 v7, 1, v5")
    a("v_xor_b32 v8, v6, v7")
    a("v_mul_u32_u24 v9, 1280, v5")
    a("v_lshl_add_u32 v%d, v8, 4, v9" % VX0)
    a("v_xor_b32 v8, 4, v8")
    a("v_lshl_add_u32 v%d, v8, 4, v9" % VX1)
    a("v_add_u32 v%d, %d, v%d" % (VX1, 8 * 1280, VX1))
    a("s_lshl_b32 s45, s41, 7")
    a("s_lshl_b32 s43, s40, 4")
    a("s_add_u32 s45, s45, s43")
    a("s_mul_i32 s45, s45, 1280")
    a("s_lshl_b32 s57, s40, 11")
    a("s_add_u32 s57, s57, %d" % XS)
    a("s_lshl_b32 s46, s60, 11")
    a("s_mov_b32 s48, 0xf7ff7fff")
    a("s_mov_b32 s49, 0xfff7ff7f")
    a("s_mul_i32 s71, s60, %d" % (8 * 3840))
    a("s_lshl_b32 s43, s60, 1")
    a("s_add_u32 s43, s43, 4")
    a("s_cmp_eq_u32 s61, 0")
    a("s_cselect_b32 s62, s60, s43")
    a("s_add_u32 s43, s41, s42")
    a("s_mul_i32 s44, s43, 26")
    a("s_lshr_b32 s44, s44, 8")
    a("s_mul_i32 s44, s44, 10")
    a("s_sub_u32 s43, s43, s44")
    a("s_mul_i32 s66, s43, %d" % (64 * 3840))
    a("s_mul_i32 s67, s43, %d" % (64 * 3072))
    a("s_lshl_b32 s65, s43, 7")
    a("s_waitcnt lgkmcnt(0)")
    srd(a, 16, 4, 2048 * 1280)
    srd(a, 20, 6, 640 * 3840)
    for n in range(2):
        S = 24 + 4 * n
        a("s_add_u32 s43, s62, %d" % n)
        a("s_cmp_ge_u32 s43, 6")
        a("s_cselect_b32 s%d, s12, s10" % S)
        a("s_cselect_b32 s%d, s13, s11" % (S + 1))
        a("s_cselect_b32 s44, 6, 0")
        a("s_and_b32 s%d, s%d, 0xffff" % (S + 1, S + 1))
        a("s_mov_b32 s%d, %d" % (S + 2, 640 * 3072))
        a("s_mov_b32 s%d, 0x00020000" % (S + 3))
        a("s_sub_u32 s44, s43, s44")
        a("s_lshl_b32 s%d, s43, 10" % (75 + n))
        a("s_add_u32 s%d, s%d, 32768" % (75 + n, 75 + n))
        a("s_lshl_b32 s44, s44, 6")
        a("v_add_u32 v5, s44, v1")
        a("v_mul_u32_u24 v6, 5462, v5")
        a("v_lshrrev_b32 v6, 16, v6")
        a("v_mul_u32_u24 v7, 12, v6")
        a("v_sub_u32 v7, v5, v7")
        a("v_mul_u32_u24 v6, 3072, v6")
        a("v_lshl_add_u32 v6, v7, 4, v6")
        a("s_mul_i32 s43, s42, 192")
        a("v_add_u32 v%d, s43, v6" % (VWF if n == 0 else 187))

    def dma_w(role, st):
        out = []; tag = "W%d" % st; slot = st % 4
        if role == 0:
            out.append("s_add_u32 s44, s66, s71")
            out.append("s_mov_b64 exec, s[48:49]")
            for j in range(2):
                out.append("s_add_u32 m0, s46, %d" % (slot * 8192 + j * 1024))
                out.append("s_nop 0" if j == 0 else "s_add_u32 s44, s44, %d" % (4 * 3840))
                out.append(("buffer_load_dwordx4 v%d, s[20:23], s44 offen lds" % VWA, tag))
            out.append("s_mov_b64 exec, -1")
            out.append("s_add_u32 s66, s66, %d" % (32 * 3840))
            out.append("s_cmp_ge_u32 s66, %d" % (640 * 3840))
            out.append("s_cselect_b32 s66, 0, s66")
        for n in range(1 if role == 0 else 2):
            out.append("s_add_u32 m0, s%d, %d" % (75 + n, slot * 12288))
            out.append("s_nop 0")
            out.append(("buffer_load_dwordx4 v%d, s[%d:%d], s67 offen lds" % (VWF if n == 0 else 187, 24 + 4 * n, 27 + 4 * n), tag))
        out.append("s_add_u32 s67, s67, %d" % (32 * 3072))
        out.append("s_cmp_ge_u32 s67, %d" % (640 * 3072))
        out.append("s_cselect_b32 s67, 0, s67")
        return out
    def dma_x(xb):
        out = []; tag = "X%d" % xb; slot = xb % 3
        out.append("s_add_u32 s44, s45, s65")
        for g in range(2):
            out.append("s_add_u32 m0, s57, %d" % (slot * 16384 + g * 1024))
            out.append("s_nop 0")
            out.append(("buffer_load_dwordx4 v%d, s[16:19], s44 offen lds" % (VX0 + g), tag))
        out.append("s_add_u32 s65, s65, 128")
        out.append("s_cmp_ge_u32 s65, 1280")
        out.append("s_cselect_b32 s65, 0, s65")
        return out

    a("s_cmp_eq_u32 s61, 1")
    a("s_cbranch_scc1 L_k1_roleB")
    for role in range(2):
        vm = Vm(a)
        def emit(l):
            if isinstance(l, tuple):
                a(l[0]); vm.issue(l[1])
            elif l == "WAIT_CSP": vm.wait("CSP")
            elif l == "WAIT_POLL": vm.wait("POLL")
            else:
                a(l)
        if role == 1:
            a.label("L_k1_roleB")
        nt = 4 if role == 0 else 6
        t0 = 0 if role == 0 else 4
        WF = [16, 40]
        XF = [32, 56] if role == 0 else [160, 164]
        for l in dma_w(role, 0): emit(l)
        for l in dma_x(0): emit(l)
        for l in dma_w(role, 1): emit(l)
        srd(a, 32, 14, 32 * 1024 * 1024)
        srd(a, 36, 8, 32 * 800)
        a("v_lshlrev_b32 v5, 3, v3")
        a("v_bfe_u32 v6, v1, 2, 2")
        a("v_add_u32 v5, v5, v6")
        a("v_mul_u32_u24 v5, %d, v5" % (256 if role == 0 else 192))
        a("v_bfe_u32 v7, v1, 4, 1")
        a("v_lshl_add_u32 v5, v7, 5, v5")
        a("v_and_b32 v7, 3, v1")
        a("v_lshl_add_u32 v5, v7, 3, v5")
        TRA = [TRB0, TRB1, 184, 185]
        if role == 0:
            for t in range(4):
                a("v_xor_b32 v7, %d, v6" % t)
                a("v_lshl_add_u32 v%d, v7, 6, v5" % TRA[t])
        else:
            a("v_add_u32 v%d, 32768, v5" % TRB0)
        a("s_lshl_b32 s43, s60, 5")
        a("v_add_u32 v5, s43, v4")
        a("v_lshlrev_b32 v5, 7, v5")
        a("v_add_u32 v5, %d, v5" % XS)
        a("v_bfe_u32 v6, v4, 1, 3")
        for ks in range(4):
            a("v_add_u32 v7, %d, v3" % (2 * ks))
            a("v_xor_b32 v7, v7, v6")
            a("v_lshl_add_u32 v%d, v7, 4, v5" % (XR0 + ks))
        a("s_lshl_b32 s63, s60, 2")
        a("s_add_u32 s64, s60, 4")
        a("s_min_u32 s64, s64, 5")
        a("s_lshl_b32 s64, s64, 2")
        if role == 0:
            a("s_lshl_b32 s43, s42, 12")
            a("s_lshl_b32 s44, s41, 8")
            a("s_add_u32 s43, s43, s44")
            a("s_add_u32 s43, s43, %d" % FLG_OFF)
            a("v_mov_b32 v5, 0")
            a("s_mov_b64 exec, 1")
            a("buffer_store_dword v5, v5, s[32:35], s43 offen sc1")
            vm.issue("FLG")
            a("s_mov_b64 exec, -1")
            a("s_mul_i32 s43, s42, 1600")
            PH = 64
            for it in range(7):
                a("v_add_u32 v5, %d, v0" % (256 * it))
                a("v_min_u32 v5, 1599, v5")
                a("v_mul_u32_u24 v6, 1311, v5")
                a("v_lshrrev_b32 v%d, 19, v6" % (72 + it))
                a("v_mul_u32_u24 v7, 400, v%d" % (72 + it))
                a("v_sub_u32 v%d, v5, v7" % (80 + it))
                a("v_and_b32 v8, 1, v%d" % (72 + it))
                a("v_mul_u32_u24 v8, 400, v8")
                a("v_add_u32 v8, v8, v%d" % (80 + it))
                a("v_lshlrev_b32 v8, 1, v8")
                a("buffer_load_ushort v%d, v8, s[36:39], s43 offen" % (PH + it))
                vm.issue("PH")
            for it in range(7):
                sl = 72 + it; rem = 80 + it
                a("v_mul_u32_u24 v8, 3277, v%d" % rem)
                a("v_lshrrev_b32 v8, 16, v8")
                a("v_mul_u32_u24 v9, 20, v8")
                a("v_sub_u32 v9, v%d, v9" % rem)
                a("v_and_b32 v10, 1, v%d" % sl)
                a("v_mul_u32_u24 v10, 5, v10")
                a("v_lshrrev_b32 v11, 2, v9")
                a("v_add_u32 v10, v10, v11")
                a("v_lshlrev_b32 v10, 3, v10")
                a("v_lshrrev_b32 v11, 1, v%d" % sl)
                a("v_lshl_add_u32 v10, v11, 2, v10")
                a("v_and_b32 v11, 3, v9")
                a("v_add_u32 v10, v10, v11")
                a("v_mul_u32_u24 v10, 160, v10")
                a("v_mul_u32_u24 v11, 20, v%d" % sl)
                a("v_add_u32 v11, v11, v8")
                a("v_and_b32 v13, 0x73, v11")
                a("v_bfe_u32 v14, v11, 2, 1")
                a("v_lshl_add_u32 v13, v14, 3, v13")
                a("v_bfe_u32 v14, v11, 3, 1")
                a("v_lshl_add_u32 v13, v14, 2, v13")
                a("v_lshl_add_u32 v10, v13, 1, v10")
                a("v_add_u32 v%d, %d, v10" % (88 + it, IMG))
        else:
            a("v_mov_b32 v8, 0"); a("v_mov_b32 v9, 0"); a("v_mov_b32 v10, 0"); a("v_mov_b32 v11, 0")
            a("v_subrev_u32 v7, 256, v0")
            a("v_lshlrev_b32 v5, 4, v7")
            a("v_add_u32 v5, %d, v5" % IMG)
            for i in range(3):
                a("ds_write_b128 v5, v[8:11] offset:%d" % (i * 4096))
            a("v_cmp_gt_u32 vcc, 192, v7")
            a("s_and_saveexec_b64 s[50:51], vcc")
            a("ds_write_b128 v5, v[8:11] offset:%d" % (3 * 4096))
            a("s_mov_b64 exec, s[50:51]")
            a("v_mov_b32 v5, %d" % CNT)
            a("ds_write_b64 v5, v[8:9]")
            a("ds_write_b64 v5, v[8:9] offset:8")

            a("v_lshrrev_b32 v5, 5, v7")
            a("v_lshlrev_b32 v5, 13, v5")
            a("v_lshl_add_u32 v5, v4, 8, v5")
            a("v_and_b32 v6, 3, v4")
            a("v_xor_b32 v6, 3, v6")
            a("v_lshl_add_u32 v5, v6, 6, v5")
            a("v_add_u32 v5, 48, v5")
            a("v_mov_b32 v8, 0x3f80")
            a("v_cmp_gt_u32 vcc, 128, v7")
            a("s_and_saveexec_b64 s[50:51], vcc")
            a("ds_write_b128 v5, v[8:11]")
            a("s_mov_b64 exec, s[50:51]")
        for i in range(6):
            a("v_mov_b32 v%d, 0" % (ST2 + i))

        srd(a, 52, 58, 256) if False else None
        a("s_mov_b32 s52, s58")
        a("s_and_b32 s53, s59, 0xffff")
        a("s_mov_b32 s54, 256")
        a("s_mov_b32 s55, 0x00020000")
        a("s_lshl_b32 s56, s42, 2")
        a("s_add_u32 s56, s56, 128")
        a("s_lshl_b32 s43, s42, 4")
        a("s_mul_i32 s50, s43, 1536")
        a("s_add_u32 s50, s50, %d" % CSP_OFF)
        a("s_mul_i32 s51, s41, 1536")
        a("s_add_u32 s51, s51, s50")
        a("s_lshl_b32 s43, s60, 7")
        a("s_add_u32 s51, s51, s43")
        if role: a("s_add_u32 s51, s51, 512")
        a("v_lshlrev_b32 v235, 6, v2")
        a("v_add_u32 v235, v235, v1")
        a("v_min_u32 v235, 319, v235")
        a("v_lshlrev_b32 v235, 2, v235")
        if role == 0:
            a("s_lshl_b32 s62, s41, 13")
            a("s_add_u32 s62, s62, %d" % SSP_OFF)
            a("s_lshl_b32 s70, s41, 2")
            a("s_lshl_b32 s43, s60, 5")
            a("v_add_u32 v188, s43, v4")
            a("v_lshlrev_b32 v188, 2, v188")
        def publish():
            out = []
            for k in range(1 if role == 0 else 2):
                out.append("v_add_f32 v%d, v%d, v%d" % (CSV + 2 * k, CSV + 2 * k, CSV + 2 * k + 1))
                out.append("v_mov_b32 v%d, v%d" % (CSV + 2 * k + 1, CSV + 2 * k))
                out.append("s_nop 1")
                out.append("v_permlane32_swap_b32 v%d, v%d" % (CSV + 2 * k + 1, CSV + 2 * k))
                out.append("s_nop 1")
                out.append("v_add_f32 v%d, v%d, v%d" % (CSV + 2 * k, CSV + 2 * k, CSV + 2 * k + 1))
                out.append("v_lshlrev_b32 v%d, 2, v4" % TMP)
                out.append(("buffer_store_dword v%d, v%d, s[32:35], s51 offen offset:%d sc1" % (CSV + 2 * k, TMP, 512 * k), "CSP"))
            if role == 0:
                out.append("v_add_f32 v%d, v%d, v%d" % (ST2, ST2, ST2 + 1))
                out.append("v_mov_b32 v%d, v%d" % (ST2 + 1, ST2))
                out.append("s_lshl_b32 s43, s42, 9")
                out.append("s_add_u32 s43, s43, s62")
                out.append("v_permlane32_swap_b32 v%d, v%d" % (ST2 + 1, ST2))
                out.append("s_nop 1")
                out.append("v_add_f32 v%d, v%d, v%d" % (ST2, ST2, ST2 + 1))
                out.append(("buffer_store_dword v%d, v188, s[32:35], s43 offen sc1" % ST2, "CSP"))
            return out
        def signal():
            if role: return []
            out = []
            out.append("s_cmp_lt_u32 s41, 10")
            out.append("s_cselect_b32 s43, 1, 0")
            out.append("s_cmp_eq_u32 s40, 0")
            out.append("s_cselect_b32 s43, s43, 0")
            out.append("v_mov_b32 v%d, 1" % TMP)
            out.append("v_mov_b32 v%d, 0" % (TMP + 1))
            out.append("s_mov_b32 exec_lo, s43")
            out.append("s_mov_b32 exec_hi, 0")
            out.append(("buffer_atomic_add v%d, v%d, s[52:55], s56 offen sc1" % (TMP, TMP + 1), "SIG"))
            out.append("s_cmp_lt_u32 s42, 10")
            out.append("s_cselect_b32 s43, 1, 0")
            out.append("s_cmp_eq_u32 s40, 0")
            out.append("s_cselect_b32 s43, s43, 0")
            out.append("s_mov_b32 exec_lo, s43")
            out.append(("buffer_atomic_add v%d, v%d, s[52:55], s70 offen sc1" % (TMP, TMP + 1), "SIG"))
            out.append("s_mov_b64 exec, -1")
            return out
        def poll():
            out = ["v_mov_b32 v%d, 0" % (TMP + 1), ("buffer_load_dword v234, v%d, s[52:55], s56 offen sc1" % (TMP + 1), "POLL")]
            if role == 0: out.append(("buffer_load_dword v189, v%d, s[52:55], s70 offen sc1" % (TMP + 1), "POLL"))
            return out
        def gather(inloop):
            out = []
            if inloop:
                out.append("WAIT_POLL")
                if role == 0: out.append("v_min_u32 v234, v234, v189")
                out.append("s_nop 0")
                out.append("v_readfirstlane_b32 s47, v234")
            out.append("s_mov_b32 s43, s50")
            for i in range(10):
                out.append(("buffer_load_dword v%d, v235, s[32:35], s43 offen sc1" % (224 + i), "GAT"))
                if i < 9: out.append("s_add_u32 s43, s43, 1536")
            if role == 0:
                for i in range(8):
                    out.append(("buffer_load_dword v%d, v188, s[32:35], s62 offen offset:%d sc1" % (190 + i, 512 * i), "GAT"))
                out.append("s_add_u32 s43, s62, 4096")
                for i in range(8, 10):
                    out.append(("buffer_load_dword v%d, v188, s[32:35], s43 offen offset:%d sc1" % (190 + i, 512 * (i - 8)), "GAT"))
            return out
        def frag_reads(st, kk, par):
            fs = WF[par]; slot = st % 4
            out = ["ds_read_b128 %s, v%d offset:%d" % (vr(XF[par], 4), XR0 + 2 * (st & 1) + kk, ((st >> 1) % 3) * 16384)]
            for t in range(nt):
                for rd in range(2):
                    if role == 0:
                        out.append("ds_read_b64_tr_b16 %s, v%d offset:%d" % (vr(fs + 4 * t + 2 * rd, 2), TRA[t], slot * 8192 + kk * 4096 + rd * 1024))
                    else:
                        out.append("ds_read_b64_tr_b16 %s, v%d offset:%d" % (vr(fs + 4 * t + 2 * rd, 2), TRB0, slot * 12288 + (t & 1) * 6144 + kk * 3072 + rd * 768 + (t >> 1) * 64))
            return out
        vm.wait(["W0", "X0"], " lgkmcnt(0)")
        a("s_barrier")
        if role == 0: stamp()
        for l in frag_reads(0, 0, 0): a(l)
        if role == 0:
            vm.wait("PH")
            for it in range(7):
                a("ds_write_b16 v%d, v%d" % (88 + it, 64 + it))
            a("s_nop 1")
        for st in range(20):
            for kk in range(2):
                g = st * 2 + kk
                par = g & 1
                cur = WF[par]
                a("s_waitcnt lgkmcnt(0)")
                bar = False; rd = []; dm = []
                if kk == 0:
                    rd = frag_reads(st, 1, par ^ 1)
                    if st == 0: dm = dma_x(1) + dma_w(role, 2)
                    if st == 1: dm = dma_x(2)
                elif st < 19:
                    bar = True
                    rd = frag_reads(st + 1, 0, par ^ 1)
                    if st == 0: dm = dma_w(role, 3)
                    if st + 4 < 20: dm = dm + dma_w(role, st + 4)
                    if (st & 1) and (st >> 1) + 3 < 10: dm = dm + dma_x((st >> 1) + 3)
                groups = []
                for k in range((1 if role == 0 else 2) if g < 4 else 0):
                    for dd in range(2):
                        gq = ["s_set_gpr_idx_on s%d, 0x2" % (63 + k)]
                        for d in (2 * dd, 2 * dd + 1):
                            gq.append("v_lshlrev_b32 v%d, 16, v%d" % (TMP + 2 * (d & 1), cur + d))
                            gq.append("v_and_b32 v%d, 0xffff0000, v%d" % (TMP + 2 * (d & 1) + 1, cur + d))
                        gq.append("s_set_gpr_idx_off")
                        for d in range(2):
                            gq.append("v_pk_add_f32 %s, %s, %s" % (vr(CSV + 2 * k, 2), vr(CSV + 2 * k, 2), vr(TMP + 2 * d, 2)))
                        groups.append(gq)
                if role == 0 and g < 4:
                    xt = XF[par]
                    for dd in range(2):
                        gq = []
                        for d in (2 * dd, 2 * dd + 1):
                            gq.append("v_lshlrev_b32 v%d, 16, v%d" % (TMP + 2 * (d & 1), xt + d))
                            gq.append("v_and_b32 v%d, 0xffff0000, v%d" % (TMP + 2 * (d & 1) + 1, xt + d))
                        for d in range(2):
                            gq.append("v_pk_fma_f32 %s, %s, %s, %s" % (vr(ST2, 2), vr(TMP + 2 * d, 2), vr(TMP + 2 * d, 2), vr(ST2, 2)))
                        groups.append(gq)
                if 'nodot' in EXP: groups = []
                if 'nodma' in EXP: dm = []
                if 'notr' in EXP: rd = rd[:1]
                slots = [[] for _ in range(nt)]
                first = 1 if bar else 0
                nrs = 3 if role else 2
                per = (len(rd) + nrs - 1) // nrs if rd else 0
                for i, l in enumerate(rd):
                    slots[first + i // per].append(l)
                for i, gq in enumerate(groups):
                    slots[(nt - 4 + i) if role else (i if g < 4 else 2 + i)].extend(gq)
                if 'noshare' in EXP: pass
                elif g == 4: slots[0].extend(publish())
                elif g == 9: slots[nt - 1].extend(signal())
                elif g == 29: slots[nt - 1].extend(poll())
                elif g == 33: slots[nt - 1].extend(gather(True))
                if dm:
                    slots[nt - 1].extend(dm)
                for t in range(nt):
                    d = ACC + 16 * t
                    if 'nomfma' not in EXP: a("v_mfma_f32_32x32x16_bf16 %s, %s, %s, %s" % (vr(d, 16), vr(cur + 4 * t, 4), vr(XF[par], 4), vr(d, 16) if g else "0"))
                    if t == 0 and bar:
                        need = ["W%d" % (st + 1)] + (["X%d" % ((st + 1) >> 1)] if (st & 1) else [])
                        if g == 9: need.append("CSP")
                        vm.wait(need)
                        a("s_barrier")
                    for l in slots[t]:
                        emit(l)
        if role == 0: stamp()
        if role == 0: a("s_setprio 3")
        lab = a.newlabel("gok"); lp = a.newlabel("gpoll")
        if 'noshare' in EXP: a("s_mov_b32 s47, 10")
        a("s_cmp_ge_u32 s47, 10")
        a("s_cbranch_scc1 %s" % lab)
        a.label(lp)
        a("v_mov_b32 v%d, 0" % (TMP + 1))
        a("buffer_load_dword v234, v%d, s[52:55], s56 offen sc1" % (TMP + 1))
        if role == 0: a("buffer_load_dword v189, v%d, s[52:55], s70 offen sc1" % (TMP + 1))
        a("s_waitcnt vmcnt(0)")
        if role == 0: a("v_min_u32 v234, v234, v189")
        a("s_nop 0")
        a("v_readfirstlane_b32 s47, v234")
        a("s_nop 3")
        a("s_cmp_ge_u32 s47, 10")
        a("s_cbranch_scc0 %s" % lp)
        for l in gather(False):
            a(l[0] if isinstance(l, tuple) else l)
        a.label(lab)
        a("s_waitcnt vmcnt(0)")
        vm.q = []
        if role == 0:
            for i in range(0, 10, 2):
                a("v_add_f32 v%d, v%d, v%d" % (190 + i, 190 + i, 191 + i))
            a("v_add_f32 v190, v190, v192")
            a("v_add_f32 v194, v194, v196")
            a("v_add_f32 v190, v190, v198")
            a("v_add_f32 v%d, v190, v194" % ST2)
        for i in range(0, 10, 2):
            a("v_add_f32 v%d, v%d, v%d" % (224 + i, 224 + i, 225 + i))
        a("v_add_f32 v224, v224, v226")
        a("v_add_f32 v228, v228, v230")
        a("v_add_f32 v224, v224, v232")
        a("v_add_f32 v224, v224, v228")
        a("v_add_u32 v9, %d, v235" % CS)
        a("ds_write_b32 v9, v224")
        a("s_lshl_b32 s43, s60, 8")
        a("s_add_u32 s43, s43, %d" % STT)
        a("v_lshlrev_b32 v11, 3, v4")
        a("v_add_u32 v11, s43, v11")
        a("v_lshlrev_b32 v10, 4, v3")
        a("v_add_u32 v10, %d, v10" % (CS + t0 * 128))
        def lnfix(accreg, csreg, n):
            for i in range(0, n, 2):
                a("v_pk_fma_f32 %s, %s, %s, %s" % (vr(accreg + i, 2), vr(NEGM, 2), vr(csreg + i, 2), vr(accreg + i, 2)))
            for i in range(0, n, 2):
                a("v_pk_mul_f32 %s, %s, %s" % (vr(accreg + i, 2), vr(RSTD, 2), vr(accreg + i, 2)))
        def kv_pre():
            a("s_mul_i32 s46, s42, %d" % (16 * 7680))
            a("s_add_u32 s46, s46, %d" % PART_OFF)
            a("v_lshlrev_b32 v8, 3, v1")
            for jj in range(2):
                a("s_add_u32 s54, s40, %d" % (8 * jj))
                a("s_min_u32 s54, s54, 14")
                a("s_lshl_b32 s%d, s54, 9" % (62 + jj))
                a("s_add_u32 s%d, s%d, s46" % (62 + jj, 62 + jj))
                a("s_mul_i32 s55, s54, 11")
                a("s_lshr_b32 s55, s55, 5")
                a("s_mul_i32 s56, s55, 3")
                a("s_sub_u32 s56, s54, s56")
                a("s_lshl_b32 s55, s55, 4")
                a("s_lshl_b32 s56, s56, 4")
                a("v_and_b32 v39, 15, v1")
                a("v_add_u32 v39, s56, v39")
                a("v_lshrrev_b32 v40, 4, v1")
                a("v_lshlrev_b32 v40, 2, v40")
                a("v_add_u32 v40, s55, v40")
                a("v_cmp_le_u32 vcc, 40, v40")
                a("s_nop 1")
                a("v_cndmask_b32 v41, 0, 1, vcc")
                a("v_mul_u32_u24 v42, 40, v41")
                a("v_sub_u32 v40, v40, v42")
                a("v_mul_u32_u24 v42, 20, v41")
                a("v_sub_u32 v42, v39, v42")
                a("v_cmp_gt_u32 s[%d:%d], 20, v42" % (64 + 2 * jj, 65 + 2 * jj))
                a("v_cmp_eq_u32 s[48:49], 40, v39")
                a("s_nop 1")
                a("v_cndmask_b32 v42, v42, 20, s[48:49]")
                a("s_or_b64 s[%d:%d], s[%d:%d], s[48:49]" % (64 + 2 * jj, 65 + 2 * jj, 64 + 2 * jj, 65 + 2 * jj))
                a("v_lshrrev_b32 v43, 2, v42")
                a("v_lshlrev_b32 v43, 3, v43")
                a("v_lshl_add_u32 v43, v41, 2, v43")
                a("v_and_b32 v44, 3, v42")
                a("v_add_u32 v43, v43, v44")
                a("v_mul_u32_u24 v43, 160, v43")
                a("v_lshrrev_b32 v44, 3, v40")
                a("v_lshlrev_b32 v44, 4, v44")
                a("v_lshl_add_u32 v44, v41, 3, v44")
                a("v_and_b32 v45, 7, v40")
                a("v_add_u32 v44, v44, v45")
                a("v_lshl_add_u32 v43, v44, 1, v43")
                a("v_add_u32 v%d, %d, v43" % (36 + jj, IMG))
        def kv_gather():
            a("s_barrier")
            if role == 0: stamp()
            for jj in range(2):
                for rr in range(16):
                    a("buffer_load_dwordx2 %s, v8, s[32:35], s%d offen sc1" % (vr(104 + 64 * jj + 4 * rr + 2, 2), 62 + jj))
                    if rr < 15: a("s_add_u32 s%d, s%d, 7680" % (62 + jj, 62 + jj))
            for jj in range(2):
                B = 104 + 64 * jj
                a("s_waitcnt vmcnt(%d)" % (16 - 16 * jj))
                for rr in range(16):
                    R = B + 4 * rr
                    a("v_lshlrev_b32 v%d, 16, v%d" % (R, R + 2))
                    a("v_and_b32 v%d, 0xffff0000, v%d" % (R + 1, R + 2))
                    a("v_lshlrev_b32 v%d, 16, v%d" % (R + 2, R + 3))
                    a("v_and_b32 v%d, 0xffff0000, v%d" % (R + 3, R + 3))
                for step in (8, 4, 2, 1):
                    for rr in range(step):
                        for i in (0, 2):
                            a("v_pk_add_f32 %s, %s, %s" % (vr(B + 4 * rr + i, 2), vr(B + 4 * rr + i, 2), vr(B + 4 * (rr + step) + i, 2)))
                a("v_cvt_pk_bf16_f32 v44, v%d, v%d" % (B, B + 1))
                a("v_cvt_pk_bf16_f32 v45, v%d, v%d" % (B + 2, B + 3))
                a("s_and_saveexec_b64 s[48:49], s[%d:%d]" % (64 + 2 * jj, 65 + 2 * jj))
                a("ds_write_b64 v%d, v[44:45]" % (36 + jj))
                a("s_mov_b64 exec, s[48:49]")
            a("s_waitcnt lgkmcnt(0)")
            a("s_barrier")
        if role == 0:
            a.nop(6)
            a("v_mov_b32 v5, v%d" % (ACC + 60))
            a("v_mov_b32 v6, v%d" % (ACC + 60))
            a("s_nop 1")
            a("v_permlane32_swap_b32 v5, v6")
            a("s_nop 1")
            a("v_mov_b32 v8, 0x3acccccd")
            a("v_mul_f32 v12, v5, v8")
            a("v_mul_f32 v13, v%d, v8" % ST2)
            a("v_fma_f32 v13, -v12, v12, v13")
            a("v_max_f32 v13, 0, v13")
            a("v_cvt_pk_bf16_f32 v14, v12, v13")
            a("v_lshlrev_b32 v12, 16, v14")
            a("v_and_b32 v13, 0xffff0000, v14")
            a("v_add_f32 v13, 0x3727c5ac, v13")
            a("v_cvt_pk_bf16_f32 v14, v13, v13")
            a("v_and_b32 v13, 0xffff0000, v14")
            a("v_sqrt_f32 v13, v13")
            a("s_nop 0")
            a("v_cvt_pk_bf16_f32 v14, v13, v13")
            a("v_and_b32 v13, 0xffff0000, v14")
            a("v_rcp_f32 v14, v13")
            a("v_sub_f32 v13, 0, v12")
            a("v_mov_b32 v12, v13")
            a("v_mov_b32 v15, v14")
            a("ds_write_b64 v11, v[13:14]" if False else "ds_write_b32 v11, v13")
            a("ds_write_b32 v11, v14 offset:4")
            a("s_waitcnt lgkmcnt(0)")
            a("s_barrier")
            CQ = 160
            for t in range(4):
                for q in range(4):
                    if t == 3 and q == 3: continue
                    a("ds_read_b128 %s, v10 offset:%d" % (vr(CQ + 16 * t + 4 * q, 4), t * 128 + q * 32))
            a("v_mul_u32_u24 v9, 160, v4")
            a("v_lshl_add_u32 v9, v3, 4, v9")
            a("v_add_u32 v9, %d, v9" % IMG)
            a("s_waitcnt lgkmcnt(0)")
            lnfix(ACC, CQ, 60)
            for i in range(30):
                a("v_cvt_pk_bf16_f32 v%d, v%d, v%d" % (16 + i, ACC + 2 * i, ACC + 2 * i + 1))
            for tp in range(3):
                for s in range(5):
                    a("ds_read_b128 %s, v9 offset:%d" % (vr(160 + 4 * (tp * 5 + s), 4), tp * 32 * 160 + s * 32))
            a("s_lshl_b32 s43, s60, 5")
            a("v_add_u32 v11, s43, v4")
            a("v_mul_u32_u24 v11, 288, v11")
            a("v_add_u32 v11, %d, v11" % TI)
            a("v_lshl_add_u32 v10, v3, 3, v11")
            a("s_waitcnt lgkmcnt(0)")
            for s in range(5):
                for tp in range(3):
                    a("v_mfma_f32_32x32x16_bf16 %s, %s, %s, %s" % (vr(64 + 16 * tp, 16), vr(160 + 4 * (tp * 5 + s), 4), vr(16 + 4 * s, 4), vr(64 + 16 * tp, 16) if s else "0"))
            for i in range(5):
                a("ds_write_b64 v10, %s offset:%d" % (vr(36 + 2 * i, 2), 160 + 16 * i))
            a("s_mov_b32 s50, 0"); a("s_mov_b32 s51, -1")
            a("s_mov_b32 s52, -1"); a("s_mov_b32 s53, 0")
            a("s_lshl_b32 s43, s41, 4")
            a("s_add_u32 s43, s43, s42")
            a("s_lshl_b32 s43, s43, 2")
            a("s_add_u32 s43, s43, s60")
            a("s_mul_i32 s47, s43, 5120")
            a("s_add_u32 s47, s47, %d" % PHIQ_OFF)
            a("v_mul_u32_u24 v9, 160, v4")
            a("v_mov_b32 v16, 0x%x" % LOG2E)
            a("v_mov_b32 v17, 0x%x" % LOG2E)
            a("v_mov_b32 v20, 0x3f80"); a("v_mov_b32 v21, 0"); a("v_mov_b32 v22, 0"); a("v_mov_b32 v23, 0")
            a("s_mov_b64 exec, s[52:53]")
            a("ds_write_b128 v11, v[20:23] offset:240")
            a("s_mov_b64 exec, -1")
            a.nop(8)
            for i in range(0, 40, 2):
                a("v_cvt_pk_bf16_f32 v%d, v%d, v%d" % (112 + i // 2, 64 + i, 65 + i))
            for i in range(0, 40, 2):
                a("v_lshlrev_b32 v%d, 16, v%d" % (64 + i, 112 + i // 2))
                a("v_and_b32 v%d, 0xffff0000, v%d" % (65 + i, 112 + i // 2))
            for hs in range(2):
                X = 64 + 20 * hs
                mx, mn = 24 + 4 * hs, 26 + 4 * hs
                a("v_max3_f32 v%d, v%d, v%d, v%d" % (mx, X, X + 1, X + 2))
                a("v_min3_f32 v%d, v%d, v%d, v%d" % (mn, X, X + 1, X + 2))
                for i in range(3, 19, 2):
                    a("v_max3_f32 v%d, v%d, v%d, v%d" % (mx, mx, X + i, X + i + 1))
                    a("v_min3_f32 v%d, v%d, v%d, v%d" % (mn, mn, X + i, X + i + 1))
                a("v_max_f32 v%d, v%d, v%d" % (mx, mx, X + 19))
                a("v_min_f32 v%d, v%d, v%d" % (mn, mn, X + 19))
                a("v_mul_f32 v%d, v%d, v16" % (mx, mx))
                a("v_mul_f32 v%d, v%d, v16" % (mn, mn))
                a("v_sub_f32 v%d, 0, v%d" % (mx, mx))
                a("v_mov_b32 v%d, v%d" % (mx + 1, mx))
                a("v_mov_b32 v%d, v%d" % (mn + 1, mn))
            for hs in range(2):
                X = 64 + 20 * hs
                mx, mn = 24 + 4 * hs, 26 + 4 * hs
                for sign in range(2):
                    E = 160 + 40 * hs + 20 * sign
                    for i in range(0, 20, 2):
                        if sign == 0:
                            a("v_pk_fma_f32 %s, %s, v[16:17], %s" % (vr(E + i, 2), vr(X + i, 2), vr(mx, 2)))
                        else:
                            a("v_pk_fma_f32 %s, %s, v[16:17], %s neg_lo:[1,0,0] neg_hi:[1,0,0]" % (vr(E + i, 2), vr(X + i, 2), vr(mn, 2)))
            for i in range(80):
                a("v_exp_f32 v%d, v%d" % (160 + i, 160 + i))
            a("s_nop 0")
            for gi in range(4):
                E = 160 + 20 * gi; S = 32 + 2 * gi
                a("v_pk_add_f32 %s, %s, %s" % (vr(S, 2), vr(E, 2), vr(E + 2, 2)))
                for i in range(4, 20, 2):
                    a("v_pk_add_f32 %s, %s, %s" % (vr(S, 2), vr(S, 2), vr(E + i, 2)))
            for gi in range(4):
                S = 32 + 2 * gi
                a("v_add_f32 v%d, v%d, v%d" % (S, S, S + 1))
            for gi in range(4):
                S = 32 + 2 * gi
                a("v_rcp_f32 v%d, v%d" % (S, S))
            a("s_nop 0")
            for gi in range(4):
                S = 32 + 2 * gi
                a("v_mov_b32 v%d, v%d" % (S + 1, S))
            for gi in range(4):
                E = 160 + 20 * gi; S = 32 + 2 * gi
                for i in range(0, 20, 2):
                    a("v_pk_mul_f32 %s, %s, %s" % (vr(E + i, 2), vr(E + i, 2), vr(S, 2)))
            for i in range(40):
                a("v_cvt_pk_bf16_f32 v%d, v%d, v%d" % (64 + i, 160 + 2 * i, 161 + 2 * i))
            a("s_mov_b64 exec, s[52:53]")
            for i in range(10):
                a("ds_write_b128 v11, %s offset:%d" % (vr(64 + 4 * i, 4), 16 * i))
            a("s_mov_b64 exec, -1")
            stamp()
            a("v_lshrrev_b32 v5, 4, v1")
            a("v_bfe_u32 v6, v1, 2, 2")
            a("v_lshl_add_u32 v5, v5, 2, v6")
            a("v_mul_u32_u24 v5, 288, v5")
            a("v_and_b32 v6, 3, v1")
            a("v_lshl_add_u32 v5, v6, 3, v5")
            a("v_add_u32 v5, %d, v5" % TI)
            a("s_lshl_b32 s43, s42, 4")
            a("s_add_u32 s43, s43, s41")
            a("s_mul_i32 s47, s43, 7680")
            a("s_add_u32 s47, s47, %d" % PART_OFF)
            a("v_lshlrev_b32 v8, 4, v1")
            def lsync(idx):
                lp = a.newlabel("lsync")
                a("v_mov_b32 v6, %d" % (CNT + 4 * idx))
                a("v_mov_b32 v7, 1")
                a("s_waitcnt lgkmcnt(0)")
                a("s_mov_b64 exec, 1")
                a("ds_add_u32 v6, v7")
                a("s_mov_b64 exec, -1")
                a.label(lp)
                a("ds_read_b32 v7, v6")
                a("s_waitcnt lgkmcnt(0)")
                a("v_readfirstlane_b32 s43, v7")
                a("s_nop 3")
                a("s_cmp_lt_u32 s43, 4")
                a("s_cbranch_scc1 %s" % lp)
            lsync(0)
            for jj in range(4):
                a("s_add_u32 s54, s60, %d" % (4 * jj))
                a("s_min_u32 s54, s54, 14")
                a("s_mul_i32 s55, s54, 11")
                a("s_lshr_b32 s55, s55, 5")
                a("s_mul_i32 s56, s55, 3")
                a("s_sub_u32 s56, s54, s56")
                a("s_lshl_b32 s55, s55, 5")
                a("s_lshl_b32 s56, s56, 5")
                a("s_add_u32 s56, s56, 160")
                a("v_add_u32 v6, s55, v5")
                a("v_add_u32 v7, s56, v5")
                B = 104 + 32 * jj
                for kt in range(4):
                    for rd in range(2):
                        a("ds_read_b64_tr_b16 %s, v6 offset:%d" % (vr(B + 8 * kt + 2 * rd, 2), (32 * kt + 16 * rd) * 288))
                        a("ds_read_b64_tr_b16 %s, v7 offset:%d" % (vr(B + 4 + 8 * kt + 2 * rd, 2), (32 * kt + 16 * rd) * 288))
                a("s_lshl_b32 s54, s54, 9")
                a("s_add_u32 s%d, s54, s47" % (68 + jj))
            a("s_waitcnt lgkmcnt(0)")
            for kt in range(4):
                for jj in range(4):
                    B = 104 + 32 * jj
                    a("v_mfma_f32_16x16x32_bf16 %s, %s, %s, %s" % (vr(16 + 4 * jj, 4), vr(B + 8 * kt, 4), vr(B + 4 + 8 * kt, 4), vr(16 + 4 * jj, 4) if kt else "0"))
            a.nop(8)
            a("v_lshlrev_b32 v8, 3, v1")
            for jj in range(4):
                a("v_cvt_pk_bf16_f32 v%d, v%d, v%d" % (40 + 2 * jj, 16 + 4 * jj, 17 + 4 * jj))
                a("v_cvt_pk_bf16_f32 v%d, v%d, v%d" % (41 + 2 * jj, 18 + 4 * jj, 19 + 4 * jj))
            for jj in range(4):
                a("buffer_store_dwordx2 %s, v8, s[32:35], s%d offen sc1" % (vr(40 + 2 * jj, 2), 68 + jj))
            a("v_mov_b32 v32, 0"); a("v_mov_b32 v33, 0"); a("v_mov_b32 v34, 0"); a("v_mov_b32 v35, 0")
            a("v_lshlrev_b32 v5, 4, v0")
            a("v_add_u32 v5, %d, v5" % IMG)
            a("ds_write_b128 v5, v[32:35]")
            a("ds_write_b128 v5, v[32:35] offset:4096")
            a("ds_write_b128 v5, v[32:35] offset:8192")
            for i in range(20):
                a("v_permlane32_swap_b32 v%d, v%d" % (64 + i, 84 + i))
            kv_pre()
            a("s_lshl_b32 s43, s41, 1")
            a("s_lshr_b32 s47, s60, 1")
            a("s_add_u32 s43, s43, s47")
            a("s_mul_i32 s43, s43, %d" % (68 * 4096))
            a("s_and_b32 s47, s60, 1")
            a("s_lshl_b32 s47, s47, 11")
            a("s_add_u32 s47, s47, s43")
            a("s_mul_i32 s43, s42, 40")
            a("v_mul_u32_u24 v9, 20, v3")
            a("v_add_u32 v9, s43, v9")
            a("v_lshlrev_b32 v10, 6, v4")
            for m in range(5):
                a("v_add_u32 v11, %d, v9" % (4 * m))
                a("v_lshrrev_b32 v12, 5, v11")
                a("v_lshlrev_b32 v12, 12, v12")
                a("v_and_b32 v11, 31, v11")
                a("v_lshl_add_u32 v12, v11, 1, v12")
                a("v_add_u32 v%d, v12, v10" % (50 + m))
            a("v_mul_u32_u24 v38, 160, v4")
            a("v_lshl_add_u32 v38, v3, 4, v38")
            a("v_add_u32 v38, %d, v38" % IMG)
            stamp()
            a("s_waitcnt vmcnt(0)")
            stamp()
            lsync(1)
            a("s_mov_b32 s52, s58")
            a("s_and_b32 s53, s59, 0xffff")
            a("s_mov_b32 s54, 256")
            a("s_mov_b32 s55, 0x00020000")
            a("s_lshl_b32 s56, s42, 2")
            a("s_add_u32 s56, s56, 64")
            a("v_mov_b32 v6, 1")
            a("v_mov_b32 v7, 0")
            lsk = a.newlabel("nopoll")
            a("s_cmp_lg_u32 s40, 0")
            a("s_cbranch_scc1 %s" % lsk)
            stamp()
            if STAMP: a("s_memrealtime s[100:101]")
            a("s_mov_b64 exec, 1")
            a("buffer_atomic_add v6, v7, s[52:55], s56 offen sc0 sc1")
            a("s_lshl_b32 s46, s42, 12")
            a("s_add_u32 s46, s46, %d" % FLG_OFF)
            a("s_lshl_b32 s44, s41, 8")
            a("s_add_u32 s44, s44, s46")
            a("s_waitcnt vmcnt(0)")
            a("v_readfirstlane_b32 s43, v6")
            a("s_nop 3")
            a("s_and_b32 s43, s43, 15")
            l2 = a.newlabel("notlast")
            a("s_cmp_lg_u32 s43, 15")
            a("s_cbranch_scc1 %s" % l2)
            a("s_mov_b64 exec, 0xffff")
            a("v_lshlrev_b32 v6, 8, v1")
            a("v_mov_b32 v9, 1")
            a("buffer_store_dword v9, v6, s[32:35], s46 offen sc1")
            a("s_mov_b64 exec, 1")
            a.label(l2)
            lp = a.newlabel("kpoll")
            a.label(lp)
            a("s_sleep 2")
            a("buffer_load_dword v6, v7, s[32:35], s44 offen sc1")
            a("s_waitcnt vmcnt(0)")
            a("v_readfirstlane_b32 s43, v6")
            a("s_nop 3")
            a("s_cmp_lg_u32 s43, 1")
            a("s_cbranch_scc1 %s" % lp)
            a("s_mov_b64 exec, -1")
            stamp()
            a.label(lsk)
            kv_gather()
            for u in range(2):
                for s_ in range(5):
                    a("ds_read_b128 %s, v38 offset:%d" % (vr(160 + 4 * (u * 5 + s_), 4), u * 32 * 160 + s_ * 32))
            a("s_waitcnt lgkmcnt(0)")
            for s_ in range(5):
                for u in range(2):
                    a("v_mfma_f32_32x32x16_bf16 %s, %s, %s, %s" % (vr(128 + 16 * u, 16), vr(160 + 4 * (u * 5 + s_), 4), vr(84 + 4 * s_, 4), vr(128 + 16 * u, 16) if s_ else "0"))
            a.nop(12)
            for i in range(0, 20, 2):
                a("v_cvt_pk_bf16_f32 v%d, v%d, v%d" % (16 + i // 2, 128 + i, 129 + i))
            a("v_cvt_pk_bf16_f32 v58, v148, v148")
            a("v_and_b32 v58, 0xffff0000, v58")
            a("v_add_f32 v58, 0x358637bd, v58")
            a("v_cvt_pk_bf16_f32 v58, v58, v58")
            a("v_and_b32 v58, 0xffff0000, v58")
            a("v_rcp_f32 v58, v58")
            for i in range(0, 20, 2):
                a("v_lshlrev_b32 v%d, 16, v%d" % (128 + i, 16 + i // 2))
                a("v_and_b32 v%d, 0xffff0000, v%d" % (129 + i, 16 + i // 2))
            a("v_mov_b32 v59, v58")
            for i in range(0, 20, 2):
                a("v_pk_mul_f32 %s, %s, v[58:59]" % (vr(128 + i, 2), vr(128 + i, 2)))
            for i in range(0, 20, 2):
                a("v_cvt_pk_bf16_f32 v%d, v%d, v%d" % (16 + i // 2, 128 + i, 129 + i))
            for m in range(5):
                a("buffer_store_dwordx2 %s, v%d, s[32:35], s47 offen" % (vr(16 + 2 * m, 2), 50 + m))
            if STAMP:
                a("s_waitcnt vmcnt(0)")
                stamp()
                a("s_waitcnt lgkmcnt(0)")
                a("s_cmp_lg_u32 s40, 0")
                a("s_cbranch_scc1 L_k1_end")
                a("v_mov_b32 v2, s98")
                a("v_mov_b32 v3, s100")
                a("s_lshl_b32 s43, s2, 3")
                a("s_add_u32 s43, s43, %d" % (30 * 1024 * 1024))
                a("v_mov_b32 v5, 0")
                a("buffer_store_dwordx2 v[2:3], v5, s[32:35], s43 offen")
                a("s_cmp_lg_u32 s2, 0")
                a("s_cbranch_scc1 L_k1_end")
                srd(a, 16, 58, 256)
                a("v_mov_b32 v2, 0")
                for i in range(nst[0]):
                    a("s_sub_u32 s43, s%d, s78" % (78 + 2 * i))
                    a("v_mov_b32 v3, s43")
                    a("buffer_store_dword v3, v2, s[16:19], 0 offen offset:%d" % (4 * i))
            a("s_endpgm")
        else:
            a("s_waitcnt lgkmcnt(0)")
            a("s_barrier")
            a("ds_read_b32 v12, v11")
            a("ds_read_b32 v14, v11 offset:4")
            def cq(t, q):
                i = 16 * t + 4 * q
                return 160 + i if i < 64 else 16 + (i - 64)
            for t in range(6):
                for q in range(4):
                    a("ds_read_b128 %s, v10 offset:%d" % (vr(cq(t, q), 4), t * 128 + q * 32))
            a("s_lshl_b32 s43, s41, 1")
            a("s_lshr_b32 s47, s60, 1")
            a("s_add_u32 s43, s43, s47")
            a("s_mul_i32 s43, s43, 68")
            a("s_mul_i32 s47, s42, 3")
            a("s_add_u32 s43, s43, s47")
            a("s_add_u32 s43, s43, 20")
            a("s_lshl_b32 s43, s43, 12")
            a("s_and_b32 s47, s60, 1")
            a("s_lshl_b32 s47, s47, 11")
            a("s_add_u32 s47, s47, s43")
            a("v_lshlrev_b32 v5, 6, v4")
            a("v_lshl_add_u32 v5, v3, 3, v5")
            a("v_mov_b32 v48, 0xc0135761"); a("v_mov_b32 v49, 0xc0135761")
            a("v_mov_b32 v50, 0x3d372713"); a("v_mov_b32 v51, 0x3d372713")
            a("v_mov_b32 v52, 1.0"); a("v_mov_b32 v53, 1.0")
            a("s_waitcnt lgkmcnt(0)")
            a("v_mov_b32 v13, v12")
            a("v_mov_b32 v15, v14")
            for t in range(6):
                lnfix(ACC + 16 * t, cq(t, 0), 16)
            for i in range(0, 96, 2):
                a("v_cvt_pk_bf16_f32 v%d, v%d, v%d" % (160 + i // 2, ACC + i, ACC + i + 1))
            for i in range(0, 96, 2):
                a("v_lshlrev_b32 v%d, 16, v%d" % (ACC + i, 160 + i // 2))
                a("v_and_b32 v%d, 0xffff0000, v%d" % (ACC + i + 1, 160 + i // 2))
            for i in range(3):
                G = ACC + 32 * i; T = 160 + 16 * i
                for e in range(0, 16, 2):
                    a("v_pk_mul_f32 %s, %s, %s" % (vr(T + e, 2), vr(G + e, 2), vr(G + e, 2)))
                for e in range(0, 16, 2):
                    a("v_pk_fma_f32 %s, %s, v[50:51], v[52:53]" % (vr(T + e, 2), vr(T + e, 2)))
                for e in range(0, 16, 2):
                    a("v_pk_mul_f32 %s, %s, %s" % (vr(T + e, 2), vr(T + e, 2), vr(G + e, 2)))
                for e in range(0, 16, 2):
                    a("v_pk_mul_f32 %s, %s, v[48:49]" % (vr(T + e, 2), vr(T + e, 2)))
            for i in range(48):
                a("v_exp_f32 v%d, v%d" % (160 + i, 160 + i))
            a("s_nop 0")
            for e in range(0, 48, 2):
                a("v_pk_add_f32 %s, %s, v[52:53]" % (vr(160 + e, 2), vr(160 + e, 2)))
            for i in range(48):
                a("v_rcp_f32 v%d, v%d" % (160 + i, 160 + i))
            a("s_nop 0")
            for i in range(3):
                G = ACC + 32 * i; T = 160 + 16 * i
                for e in range(0, 16, 2):
                    a("v_pk_mul_f32 %s, %s, %s" % (vr(T + e, 2), vr(T + e, 2), vr(G + e, 2)))
            for e in range(0, 48, 2):
                a("v_cvt_pk_bf16_f32 v%d, v%d, v%d" % (16 + e // 2, 160 + e, 161 + e))
            for e in range(0, 48, 2):
                a("v_lshlrev_b32 v%d, 16, v%d" % (160 + e, 16 + e // 2))
                a("v_and_b32 v%d, 0xffff0000, v%d" % (161 + e, 16 + e // 2))
            for i in range(3):
                U = ACC + 32 * i + 16; T = 160 + 16 * i
                for e in range(0, 16, 2):
                    a("v_pk_mul_f32 %s, %s, %s" % (vr(T + e, 2), vr(T + e, 2), vr(U + e, 2)))
            for e in range(0, 48, 2):
                a("v_cvt_pk_bf16_f32 v%d, v%d, v%d" % (16 + e // 2, 160 + e, 161 + e))
            for i in range(3):
                for q in range(4):
                    a("buffer_store_dwordx2 %s, v5, s[32:35], s47 offen offset:%d" % (vr(16 + 8 * i + 2 * q, 2), q * 16))
                a("s_add_u32 s47, s47, 4096")
            a("s_load_dwordx2 s[4:5], s[0:1], 24")
            a("s_load_dwordx2 s[6:7], s[0:1], 56")
            a("v_subrev_u32 v7, 256, v0")
            for rnd in range(2):
                a("v_add_u32 v9, %d, v7" % (256 * rnd))
                a("v_min_u32 v9, 319, v9")
                a("v_mul_u32_u24 v10, 6554, v9")
                a("v_lshrrev_b32 v10, 16, v10")
                a("v_mul_u32_u24 v11, 10, v10")
                a("v_sub_u32 v11, v9, v11")
                a("v_bfe_u32 v12, v10, 2, 2")
                a("v_lshlrev_b32 v12, 3, v12")
                a("v_lshrrev_b32 v13, 4, v10")
                a("v_lshlrev_b32 v13, 2, v13")
                a("v_and_b32 v14, 3, v10")
                a("v_add3_u32 v12, v12, v13, v14")
                a("v_mul_u32_u24 v12, 1280, v12")
                a("v_lshl_add_u32 v%d, v11, 4, v12" % (60 + rnd))
                a("v_lshlrev_b32 v%d, 4, v9" % (62 + rnd))
            a("s_waitcnt lgkmcnt(0)")
            a("s_mov_b32 s23, 0x00020000")
            for j in range(3):
                a("s_add_u32 s43, s2, %d" % (256 * j))
                a("s_min_u32 s43, s43, 543")
                a("s_lshr_b32 s44, s43, 3")
                a("s_and_b32 s46, s43, 7")
                a("s_cmp_lt_u32 s44, 20")
                a("s_cselect_b32 s20, s4, s6")
                a("s_cselect_b32 s21, s5, s7")
                a("s_cselect_b32 s47, 0, 20")
                a("s_and_b32 s21, s21, 0xffff")
                a("s_mov_b32 s22, %d" % (1536 * 1280))
                a("s_sub_u32 s47, s44, s47")
                a("s_mul_i32 s47, s47, %d" % (32 * 1280))
                a("s_mul_i32 s43, s46, 160")
                a("s_add_u32 s47, s47, s43")
                for rnd in range(2):
                    a("buffer_load_dwordx4 %s, v%d, s[20:23], s47 offen" % (vr(64 + 8 * j + 4 * rnd, 4), 60 + rnd))
                a("s_mul_i32 s43, s46, 68")
                a("s_add_u32 s43, s43, s44")
                a("s_mul_i32 s43, s43, 5120")
                a("s_add_u32 s%d, s43, %d" % (68 + j, WT_OFF))
            for j in range(3):
                a("s_waitcnt vmcnt(%d)" % (4 - 2 * j + 2 * j if False else 4))
                for rnd in range(2):
                    a("buffer_store_dwordx4 %s, v%d, s[32:35], s%d offen" % (vr(64 + 8 * j + 4 * rnd, 4), 62 + rnd, 68 + j))
            kv_pre()
            kv_gather()
    a.label("L_k1_end")
    a("s_endpgm")
    return dict(name=name, vgpr=256, sgpr=102, grid=256, block=512, lds=LDS, accum=256)
```
